```python
import torch

def _softmax(x, axis=-1):
    return torch.softmax(x, dim=axis)
def _gelu(x):
    return torch.nn.functional.gelu(x, approximate="tanh")
def _silu(x):
    return torch.nn.functional.silu(x)
def _sigmoid(x):
    return torch.sigmoid(x)
def _layernorm(x, axis=-1, eps=1e-5):
    m = x.mean(dim=axis, keepdim=True)
    v = x.var(dim=axis, keepdim=True, unbiased=False)
    return (x - m) / torch.sqrt(v + eps)
def _scatter_add(tgt, idx, src, axis=0):
    return tgt.clone().index_add_(axis, idx, src)
def _segment_sum(src, seg, n):
    out = torch.zeros((n,) + src.shape[1:], dtype=src.dtype)
    return out.index_add_(0, seg, src)
def _pad(x, pw):
    flat = tuple(v for pair in reversed(pw) for v in pair)
    return torch.nn.functional.pad(x, flat)

kernel_name = 'parallel_sum__ssm_conv_s4d__moe_arch_mod__prompt'

def setup_inputs():

    _w = (lambda a: (lambda t: t.to(torch.bfloat16) if t.is_floating_point() else t)(torch.as_tensor(a)))
    def _A_setup():
        Bsz, L, D, N = 1, 2048, 512, 128
        return {
            "u": _w((lambda *s: torch.randn(*s, dtype=torch.bfloat16) * 0.05)(Bsz, L, D)),
            "log_A_real": _w((lambda *s: torch.randn(*s, dtype=torch.bfloat16) * 3.2)(D, N) * 0.5),
            "A_imag": _w((lambda *s: torch.randn(*s, dtype=torch.bfloat16) * 0.1)(D, N) * 3.14),
            "C_real": _w((lambda *s: torch.randn(*s, dtype=torch.bfloat16) * 0.8)(D, N) / N ** 0.5),
            "C_imag": _w((lambda *s: torch.randn(*s, dtype=torch.bfloat16) * 0.8)(D, N) / N ** 0.5),
            "log_dt": _w((lambda *s: torch.randn(*s, dtype=torch.bfloat16) * 0.1)(D) * 0.5 - 4.0),
            "D_skip": _w((lambda *s: torch.randn(*s, dtype=torch.bfloat16) * 0.1)(D)),
        }
    _A_in = _A_setup()

    def _B_setup():
        B, S, D, F, C = 1, 2048, 512, 1792, 2
        return {
            "x": _w((lambda *s: torch.randn(*s, dtype=torch.bfloat16) * 0.05)(B, S, D)),
            "w_r": _w((lambda *s: torch.randn(*s, dtype=torch.bfloat16) * 0.05)(D)),
            "w_gate": _w((lambda *s: torch.randn(*s, dtype=torch.bfloat16) * 0.05)(D, F)),
            "w_up": _w((lambda *s: torch.randn(*s, dtype=torch.bfloat16) * 0.05)(D, F)),
            "w_down": _w((lambda *s: torch.randn(*s, dtype=torch.bfloat16) * 0.05)(F, D)),
        }
    _B_in = _B_setup()

    return {
        "A_u": _A_in["u"],
        "A_log_A_real": _A_in["log_A_real"],
        "A_A_imag": _A_in["A_imag"],
        "A_C_real": _A_in["C_real"],
        "A_C_imag": _A_in["C_imag"],
        "A_log_dt": _A_in["log_dt"],
        "A_D_skip": _A_in["D_skip"],
        "B_x": _B_in["x"],
        "B_w_r": _B_in["w_r"],
        "B_w_gate": _B_in["w_gate"],
        "B_w_up": _B_in["w_up"],
        "B_w_down": _B_in["w_down"],
    }

def reference(A_u, A_log_A_real, A_A_imag, A_C_real, A_C_imag, A_log_dt, A_D_skip, B_x, B_w_r, B_w_gate, B_w_up, B_w_down):
    def _A_ref(u, log_A_real, A_imag, C_real, C_imag, log_dt, D_skip):
        L = u.shape[1]
        dt = torch.exp(log_dt)
        A = -torch.exp(log_A_real) + 1j * A_imag
        C = (C_real + 1j * C_imag) * dt[:, None]
        pos = (lambda x, dt: x.to(dt))(torch.arange(L), log_dt.dtype)
        P = torch.exp((A * dt[:, None])[:, :, None] * pos[None, None, :])
        K = 2.0 * torch.einsum("dn,dnl->dl", C, P).real
        L2 = 2 * L
        u_t = (lambda x, *d: x.permute(*d))(u, 0, 2, 1)
        Kf = (lambda x, *a, **k: torch.fft.rfft(x.float(), *a, **k))(K, L2)
        Uf = (lambda x, *a, **k: torch.fft.rfft(x.float(), *a, **k))(u_t, L2)
        y = (lambda x, *a, **k: torch.fft.irfft(x, *a, **k).to(torch.bfloat16))(Uf * Kf[None, :, :], L2)[:, :, :L]
        y = (lambda x, *d: x.permute(*d))(y, 0, 2, 1)
        return y + u * D_skip[None, None, :]

    def _B_ref(x, w_r, w_gate, w_up, w_down):
        B, S, D = x.shape
        C = 2
        r = x @ w_r
        idx = torch.argsort(-r, axis=-1)[:, :C]
        idx_e = (lambda x, n, axis: torch.repeat_interleave(x, n, dim=axis))(idx.reshape(B, C, 1), D, axis=2)
        x_sel = (lambda x, i, axis: torch.take_along_dim(x, i, dim=axis))(x, idx_e, axis=1)
        g = _silu(x_sel @ w_gate)
        u = x_sel @ w_up
        y = (g * u) @ w_down
        r_sel = _sigmoid((lambda x, i, axis: torch.take_along_dim(x, i, dim=axis))(r, idx, axis=1))
        y = y * r_sel.reshape(B, C, 1)
        b_off = (torch.arange(B) * S).reshape(B, 1)
        flat_idx = (idx + b_off).reshape(B * C)
        zero = (x * 0.0).reshape(B * S, D)
        upd = _scatter_add(zero, flat_idx, y.reshape(B * C, D), axis=0)
        return x + upd.reshape(B, S, D)

    x = A_u
    xn = _layernorm(x, axis=-1)
    return x + _A_ref(xn, A_log_A_real, A_A_imag, A_C_real, A_C_imag, A_log_dt, A_D_skip) + _B_ref(xn, B_w_r, B_w_gate, B_w_up, B_w_down)
```

```python
import re

TRANS = ("v_exp_f32", "v_log_f32", "v_rcp_f32", "v_rsq_f32", "v_sqrt_f32", "v_sin_f32", "v_cos_f32", "v_rcp_iflag_f32")

def regs_of(tok):
    tok = tok.strip()
    neg = tok.lstrip("-")
    m = re.fullmatch(r"abs\((.*)\)", neg)
    if m: neg = m.group(1)
    neg = neg.strip("|")
    m = re.fullmatch(r"([vsa])(\d+)", neg)
    if m: return {(m.group(1), int(m.group(2)))}
    m = re.fullmatch(r"([vsa])\[(\d+):(\d+)\]", neg)
    if m: return {(m.group(1), i) for i in range(int(m.group(2)), int(m.group(3)) + 1)}
    if neg == "vcc": return {("s", "vcc")}
    if neg in ("vcc_lo", "vcc_hi"): return {("s", "vcc")}
    if neg in ("exec", "exec_lo", "exec_hi"): return {("s", "exec")}
    if neg == "m0": return {("s", "m0")}
    return set()

class Ins:
    __slots__ = ("text", "op", "ops", "kind", "vw", "vr", "sw", "sr", "dpp", "srcA", "srcB", "srcC", "passes", "label", "target", "wide_store", "sdwa_dst")
    def __init__(self, text):
        self.text = text
        self.label = None; self.target = None
        self.vw = set(); self.vr = set(); self.sw = set(); self.sr = set()
        self.dpp = False; self.passes = 0; self.wide_store = False; self.sdwa_dst = False
        self.srcA = set(); self.srcB = set(); self.srcC = set()
        t = text.split(";")[0].strip()
        if not t:
            self.kind = "none"; self.op = ""; self.ops = []; return
        if t.endswith(":"):
            self.kind = "label"; self.label = t[:-1]; self.op = ""; self.ops = []; return
        if t.startswith("."):
            self.kind = "dir"; self.op = t; self.ops = []; return
        parts = t.split(None, 1)
        op = parts[0]; self.op = op
        rest = parts[1] if len(parts) > 1 else ""
        ops = []; depth = 0; cur = ""
        for ch in rest:
            if ch in "[(": depth += 1
            if ch in "])": depth -= 1
            if ch == "," and depth == 0:
                ops.append(cur.strip()); cur = ""
            else: cur += ch
        if cur.strip(): ops.append(cur.strip())
        mods = ""
        if ops:
            last = ops[-1].split(None, 1)
            if len(last) > 1 and not last[0].startswith("hwreg"):
                ops[-1] = last[0]; mods = last[1]
            elif len(last) == 1 and re.match(r"(row_|quad_|offset|sc[01]|nt$|op_sel|neg_)", last[0]) :
                mods = last[0]; ops.pop()
        self.ops = ops
        R = [regs_of(o) for o in ops]
        V = lambda s: {r for r in s if r[0] in "va"}
        S = lambda s: {r for r in s if r[0] == "s"}
        base = re.sub(r"_(e32|e64|dpp|sdwa)$", "", op)
        if op.startswith("v_mfma"):
            self.kind = "mfma"
            self.vw = V(R[0]); self.srcA = V(R[1]); self.srcB = V(R[2]); self.srcC = V(R[3]) if len(R) > 3 else set()
            self.vr = self.srcA | self.srcB | self.srcC
            self.passes = 8 if "32x32" in op else 4
        elif op.startswith("v_"):
            self.kind = "trans" if base in TRANS else "valu"
            self.dpp = ("_dpp" in op) or bool(re.search(r"row_|quad_perm|wave_", mods))
            self.sdwa_dst = "dst_sel:" in mods and "dst_sel:DWORD" not in mods
            if base.startswith("v_cmp"):
                self.sw = S(R[0]);
                for r in R[1:]: self.vr |= V(r); self.sr |= S(r)
            elif base in ("v_readfirstlane_b32", "v_readlane_b32"):
                self.sw = S(R[0]); self.vr = V(R[1])
                if len(R) > 2: self.sr |= S(R[2])
            elif base == "v_writelane_b32":
                self.vw = V(R[0]); self.vr = V(R[0])
                for r in R[1:]: self.sr |= S(r)
            elif base in ("v_permlane32_swap_b32", "v_permlane16_swap_b32"):
                self.vw = V(R[0]) | V(R[1]); self.vr = set(self.vw)
            elif base in ("v_add_co_u32", "v_sub_co_u32", "v_addc_co_u32", "v_subb_co_u32"):
                self.vw = V(R[0]); self.sw = S(R[1])
                for r in R[2:]: self.vr |= V(r); self.sr |= S(r)
            else:
                self.vw = V(R[0])
                for r in R[1:]: self.vr |= V(r); self.sr |= S(r)
                if base in ("v_fmac_f32", "v_dot2c_f32_bf16", "v_pk_fmac_f16") or self.dpp or self.sdwa_dst:
                    self.vr |= V(R[0])
                if base == "v_cndmask_b32" and len(ops) == 3: self.sr.add(("s", "vcc"))
            self.sr.add(("s", "exec"))
        elif op.startswith("ds_"):
            self.kind = "ds"
            if op.startswith("ds_read") or op.startswith("ds_bpermute") or op.startswith("ds_permute") or op.startswith("ds_swizzle") or "_rtn" in op:
                self.vw = V(R[0])
                for r in R[1:]: self.vr |= V(r)
            else:
                for r in R: self.vr |= V(r)
        elif op.startswith("global_") or op.startswith("buffer_"):
            self.kind = "vmem"
            if "load_lds" in op:
                for r in R: self.vr |= V(r); self.sr |= S(r)
                self.sr.add(("s", "m0"))
            elif "load" in op:
                self.vw = V(R[0])
                for r in R[1:]: self.vr |= V(r); self.sr |= S(r)
            elif "atomic" in op and "sc0" in mods:
                self.vw = V(R[0])
                for r in R[1:]: self.vr |= V(r); self.sr |= S(r)
            else:
                for r in R: self.vr |= V(r); self.sr |= S(r)
                if re.search(r"x3|x4", op): self.wide_store = True; self.srcA = V(R[1]) if op.startswith("global_") else V(R[0])
        elif op.startswith("s_"):
            if op in ("s_branch",) or op.startswith("s_cbranch"):
                self.kind = "branch"; self.target = ops[0]
            elif op == "s_endpgm": self.kind = "end"
            elif op == "s_nop": self.kind = "nop"
            elif op.startswith("s_load") or op in ("s_memtime", "s_memrealtime"):
                self.kind = "smem"; self.sw = S(R[0])
                for r in R[1:]: self.sr |= S(r)
            elif op in ("s_waitcnt", "s_barrier", "s_sleep", "s_setprio"):
                self.kind = "misc"
            else:
                self.kind = "salu"
                if op.startswith("s_cmp") or op.startswith("s_bitcmp"):
                    for r in R: self.sr |= S(r)
                else:
                    self.sw = S(R[0]) if R else set()
                    for r in R[1:]: self.sr |= S(r)
                    if "saveexec" in op: self.sw.add(("s", "exec")); self.sr.add(("s", "exec"))
        else:
            raise ValueError("unknown instruction: " + text)
    def states(self):
        if self.kind in ("none", "label", "dir"): return 0
        if self.kind == "nop": return int(self.ops[0], 0) + 1
        return 1

def need(prod, cons):
    n = 0
    pv = prod.kind in ("valu", "trans")
    cv = cons.kind in ("valu", "trans")
    if pv:
        vw = prod.vw; sw = prod.sw
        if vw:
            if cons.op.startswith(("v_readlane", "v_readfirstlane")) and vw & cons.vr: n = max(n, 1)
            if cv and cons.dpp and vw & cons.vr: n = max(n, 2)
            if cons.op.startswith("v_permlane") and vw & cons.vr: n = max(n, 2)
            if cons.kind == "mfma" and vw & cons.vr: n = max(n, 2)
            if prod.kind == "trans" and cons.kind in ("valu", "mfma") and vw & cons.vr: n = max(n, 1)
            if prod.kind == "trans" and cons.kind in ("vmem", "ds") and vw & cons.vr: n = max(n, 1)
            if prod.sdwa_dst and cv and vw & (cons.vr | cons.vw): n = max(n, 1)
        if sw:
            sw2 = sw - {("s", "exec")}
            if cv and sw2 & cons.sr:
                n = max(n, 4 if cons.op.startswith(("v_readlane", "v_writelane")) else 2)
            if cons.kind == "vmem" and sw & cons.sr: n = max(n, 5)
            if ("s", "vcc") in sw and cons.op.startswith("s_cbranch_vcc"): n = max(n, 1)
    if prod.kind == "salu":
        if ("s", "m0") in prod.sw and cons.kind == "vmem" and ("s", "m0") in cons.sr: n = max(n, 1)
        if ("s", "exec") in prod.sw and cv and cons.dpp: n = max(n, 1)
    if prod.kind == "mfma":
        p = prod.passes
        D = prod.vw
        if cons.kind == "mfma":
            if D & (cons.srcA | cons.srcB): n = max(n, 8 if p == 4 else 12)
            if D & cons.srcC and not (D == cons.srcC and p == cons.passes): n = max(n, 6 if p == 4 else 10)
            if D & cons.vw and not (D == cons.vw and p == cons.passes) : n = max(n, 6 if p == 4 else 10)
        elif cons.kind in ("valu", "trans", "vmem", "ds"):
            if D & (cons.vr | cons.vw): n = max(n, 8 if p == 4 else 12)
        if cv and prod.srcC & cons.vw: n = max(n, 3 if p == 4 else 7)
    if prod.wide_store:
        if cv and prod.srcA & cons.vw: n = max(n, 2)
        elif cons.kind in ("ds", "vmem", "mfma") and prod.srcA & cons.vw: n = max(n, 1)
    if prod.kind == "ds" and prod.op.startswith("ds_write") and re.search(r"b96|b128|2_b64", prod.op):
        if cv and prod.vr & cons.vw: n = max(n, 0)
    return n

class Asm:
    def __init__(self):
        self.lines = []
    def __call__(self, s=""):
        for l in s.split("\n"):
            l = l.strip()
            if l: self.lines.append(l)
    def label(self, name): self.lines.append(name + ":")
    def finish(self, maxlook=20):
        ins = [Ins(l) for l in self.lines]
        labels = {i.label: k for k, i in enumerate(ins) if i.kind == "label"}
        srcs = {}
        for k, i in enumerate(ins):
            if i.kind == "branch": srcs.setdefault(i.target, []).append(k)
        extra = [0] * len(ins)
        def required(k):
            cons = ins[k]; best = 0
            seen = set()
            stack = [(k - 1, 0)]
            while stack:
                j, dist = stack.pop()
                while j >= 0 and dist < maxlook:
                    if (j, dist) in seen: break
                    seen.add((j, dist))
                    p = ins[j]
                    if p.kind == "label":
                        for b in srcs.get(p.label, []):
                            stack.append((b, dist))
                        j -= 1
                        if j >= 0 and (ins[j].kind == "end" or ins[j].op == "s_branch"): break
                        continue
                    if p.kind in ("none", "dir"):
                        j -= 1; continue
                    r = need(p, cons)
                    if r > dist: best = max(best, r - dist)
                    dist += p.states() + extra[j]
                    j -= 1
            return best
        for it in range(2):
            for k, i in enumerate(ins):
                if i.kind in ("none", "label", "dir"): continue
                old = extra[k]; extra[k] = 0
                r = required(k)
                extra[k] = max(r, 0)
        out = []; nn = 0
        for k, i in enumerate(ins):
            e = extra[k]
            while e > 0:
                c = min(e, 16); out.append(f"    s_nop {c-1}"); e -= c; nn += 1
            if i.kind == "label": out.append(i.text)
            else: out.append("    " + i.text)
        self.nnops = nn
        return "\n".join(out) + "\n"
```

```python
import sys, struct
from asmlib import Asm

KN = "parallel_sum__ssm_conv_s4d__moe_arch_mod__prompt_kernel"

def f2u(x): return struct.unpack("<I", struct.pack("<f", x))[0]
def hx(x): return hex(x & 0xFFFFFFFF)

RS = 1040
L_XB = 0
L_XNB = L_XB + 8 * RS
L_RV = L_XNB + 8 * RS
L_IDX = L_RV + 16
L_FLAG = L_IDX + 32
L_H = L_FLAG + 16
L_KEYS = L_H + 64 + 16
L_KT = L_KEYS + 4096
KT_STRIDE = 16 + 1344 + 48
L_U = L_KT + 2 * KT_STRIDE
U_STRIDE = 4640
L_XS = L_U + 4 * U_STRIDE
L_WG = L_XS + 2048
L_WU = L_WG + 16384
L_TAB = L_WU + 16384
TROW = 544
TCH = 64 * TROW
L_KC = L_TAB
KC_E = 4160
KC_CH = 4 * KC_E
L_YALL = L_TAB + 2 * KC_CH
LDS_SIZE = L_TAB + 2 * TCH
assert L_U % 16 == 0 and L_TAB % 16 == 0 and L_KT % 16 == 0 and L_KEYS % 16 == 0 and L_XS % 16 == 0
assert LDS_SIZE <= 160 * 1024

WS_STATS = 0x1000
WS_E1 = 0x100000
WS_E2 = 0x500000
WS_E3 = 0x900000
WS_STAMP = 0x8000000
NFFN = 112
POLL_MAX = 20000

class Gen:
    def __init__(self, stamps=False, dump=None, sleep1=4, sleep2=20, probe=True):
        self.a = Asm(); self.stamps = stamps; self.dump = dump
        self.sleep1 = sleep1; self.sleep2 = sleep2; self.probe = probe
        self.nst = 0

    def stamp(self, i):
        if self.stamps:
            self.a(f"s_memrealtime s[{70+2*i}:{71+2*i}]")

    def reduce_sum2(self, va, vb):
        a = self.a
        for ctl in ("row_shr:1", "row_shr:2", "row_shr:4", "row_shr:8"):
            a(f"v_add_f32_dpp v{va}, v{va}, v{va} {ctl} row_mask:0xf bank_mask:0xf bound_ctrl:1")
            if vb is not None: a(f"v_add_f32_dpp v{vb}, v{vb}, v{vb} {ctl} row_mask:0xf bank_mask:0xf bound_ctrl:1")
        for ctl in ("row_bcast:15 row_mask:0xa", "row_bcast:31 row_mask:0xc"):
            a(f"v_add_f32_dpp v{va}, v{va}, v{va} {ctl} bank_mask:0xf")
            if vb is not None: a(f"v_add_f32_dpp v{vb}, v{vb}, v{vb} {ctl} bank_mask:0xf")

    def reduce_maxu(self, va):
        a = self.a
        for ctl in ("row_shr:1", "row_shr:2", "row_shr:4", "row_shr:8"):
            a(f"v_max_u32_dpp v{va}, v{va}, v{va} {ctl} row_mask:0xf bank_mask:0xf bound_ctrl:1")
        for ctl in ("row_bcast:15 row_mask:0xa", "row_bcast:31 row_mask:0xc"):
            a(f"v_max_u32_dpp v{va}, v{va}, v{va} {ctl} bank_mask:0xf")

    def exp_precise(self, dst, x, t0, t1):
        a = self.a
        a(f"v_mul_f32 v{t0}, s60, v{x}")
        a(f"v_rndne_f32 v{t1}, v{t0}")
        a(f"v_sub_f32 v{t0}, v{t0}, v{t1}")
        a(f"v_fmac_f32 v{t0}, s61, v{x}")
        a(f"v_exp_f32 v{dst}, v{t0}")
        a(f"v_cvt_i32_f32 v{t1}, v{t1}")
        a(f"v_ldexp_f32 v{dst}, v{dst}, v{t1}")

    def unpack8(self, dst, src):
        a = self.a
        for i in range(4):
            a(f"v_lshlrev_b32 v{dst+2*i}, 16, v{src+i}")
            a(f"v_and_b32 v{dst+2*i+1}, s62, v{src+i}")

    def normalize8(self, f, vm, vrs, outp):
        a = self.a
        for i in range(4):
            a(f"v_pk_add_f32 v[{f+2*i}:{f+2*i+1}], v[{f+2*i}:{f+2*i+1}], v[{vm}:{vm+1}] op_sel_hi:[1,0] neg_lo:[0,1] neg_hi:[0,1]")
        for i in range(4):
            a(f"v_cvt_pk_bf16_f32 v{outp+i}, v{f+2*i}, v{f+2*i+1}")
        self.unpack8(f, outp)
        for i in range(4):
            a(f"v_pk_mul_f32 v[{f+2*i}:{f+2*i+1}], v[{f+2*i}:{f+2*i+1}], v[{vrs}:{vrs+1}] op_sel_hi:[1,0]")
        for i in range(4):
            a(f"v_cvt_pk_bf16_f32 v{outp+i}, v{f+2*i}, v{f+2*i+1}")

    def rcp_refined(self, dst, sq, t):
        a = self.a
        a(f"v_rcp_f32 v{dst}, v{sq}")
        a(f"v_fma_f32 v{t}, -v{sq}, v{dst}, 1.0")
        a(f"v_fma_f32 v{dst}, v{dst}, v{t}, v{dst}")

    def cmul(self, d, x, y, t):
        a = self.a
        a(f"v_pk_mul_f32 v[{t}:{t+1}], v[{x}:{x+1}], v[{y}:{y+1}] op_sel_hi:[1,0]")
        a(f"v_pk_fma_f32 v[{d}:{d+1}], v[{x}:{x+1}], v[{y}:{y+1}], v[{t}:{t+1}] op_sel:[1,1,0] op_sel_hi:[0,1,1] neg_lo:[1,0,0]")

    def poll(self, name, loads, tagregs, probe_off=None, sleep=4, tmp=60):
        a = self.a
        for (d, va, sb, ex), tg in zip(loads, tagregs):
            a(f"v_not_b32 v{tg}, s33") if False else None
        a(f"s_mov_b32 s41, 0")
        a(f"s_not_b32 s42, s33")
        for tg in tagregs: a(f"v_mov_b32 v{tg}, s42")
        a.label(f"L_{name}_loop")
        for n, ((d, va, sb, ex), tg) in enumerate(zip(loads, tagregs)):
            a(f"v_cmp_ne_u32 vcc, s33, v{tg}")
            a(f"s_and_b64 exec, vcc, s[64:65]" if ex else "s_mov_b64 exec, vcc")
            a(f"s_cbranch_execz L_{name}_skip{n}")
            a(f"global_load_dwordx4 v[{d}:{d+3}], v{va}, s[{sb}:{sb+1}] sc1")
            a.label(f"L_{name}_skip{n}")
            a("s_mov_b64 exec, -1")
        a("s_waitcnt vmcnt(0)")
        a("s_mov_b64 s[42:43], 0")
        for n, ((d, va, sb, ex), tg) in enumerate(zip(loads, tagregs)):
            a(f"v_cmp_ne_u32 vcc, s33, v{tg}")
            if ex: a("s_and_b64 vcc, vcc, s[64:65]")
            a("s_or_b64 s[42:43], s[42:43], vcc")
        a("s_cmp_eq_u64 s[42:43], 0")
        a(f"s_cbranch_scc1 L_{name}_done")
        a("s_add_u32 s41, s41, 1")
        a(f"s_cmp_gt_u32 s41, {POLL_MAX}")
        a(f"s_cbranch_scc1 L_{name}_done")
        a(f"s_sleep {sleep}")
        a(f"s_branch L_{name}_loop")
        a.label(f"L_{name}_done")

    def probe_poll(self, name, va, sb, vt, sleep):
        a = self.a
        a("s_mov_b32 s41, 0")
        a("s_mov_b64 exec, 1")
        a.label(f"L_{name}_probe")
        a(f"global_load_dwordx4 v[{vt}:{vt+3}], v{va}, s[{sb}:{sb+1}] sc1")
        a("s_add_u32 s41, s41, 1")
        a(f"s_cmp_gt_u32 s41, {POLL_MAX}")
        a(f"s_cbranch_scc1 L_{name}_pdone")
        a("s_waitcnt vmcnt(0)")
        a(f"v_cmp_ne_u32 vcc, s33, v{vt+2}")
        a(f"s_cbranch_vccz L_{name}_pdone")
        a(f"s_sleep {sleep}")
        a(f"s_branch L_{name}_probe")
        a.label(f"L_{name}_pdone")
        a("s_waitcnt vmcnt(0)")
        a("s_mov_b64 exec, -1")

    def build(self):
        a = self.a
        a.label(KN)
        a("s_cmp_ge_u32 s2, 256")
        a("s_cbranch_scc1 L_end")
        a("s_load_dwordx16 s[4:19], s[0:1], 0")
        a("s_load_dwordx8 s[20:27], s[0:1], 64")
        a("s_load_dwordx2 s[28:29], s[0:1], 96")
        a("s_load_dwordx2 s[30:31], s[0:1], 112")
        self.stamp(0)
        a("v_lshrrev_b32 v16, 6, v0")
        a("v_and_b32 v1, 63, v0")
        a("v_readfirstlane_b32 s32, v16")
        a("v_lshlrev_b32 v17, 4, v1")
        a("s_lshl_b32 s34, s2, 3")
        a("s_add_u32 s34, s34, s32")
        a("s_lshl_b32 s35, s34, 10")
        a("s_cmp_eq_u32 s32, 8")
        a("s_cbranch_scc1 L_aux")
        a("v_add_u32 v16, s35, v17")
        a("s_waitcnt lgkmcnt(0)")
        a("global_load_dwordx4 v[20:23], v16, s[4:5]")
        a("s_load_dword s38, s[4:5], s35")
        a("s_load_dword s33, s[30:31], 0")
        a("s_lshl_b32 s39, s2, 2")
        a("s_load_dword s40, s[14:15], s39")
        a("global_load_dwordx4 v[24:27], v17, s[20:21]")
        a("s_lshr_b32 s41, s32, 2")
        a("s_lshl_b32 s42, s2, 1")
        a("s_add_u32 s42, s42, s41")
        a("s_lshl_b32 s42, s42, 8")
        a("s_and_b32 s43, s32, 1")
        a("s_lshl_b32 s39, s43, 7")
        a("s_add_u32 s42, s42, s39")
        a("v_lshl_add_u32 v18, v1, 1, s42")
        a("global_load_ushort v28, v18, s[6:7]")
        a("global_load_ushort v29, v18, s[8:9]")
        a("global_load_ushort v30, v18, s[10:11]")
        a("global_load_ushort v31, v18, s[12:13]")
        a("v_and_b32 v19, 0x1fe, v0")
        a("global_load_ushort v14, v19, s[16:17]")
        a("global_load_ushort v15, v19, s[16:17] offset:512")
        self.consts()
        a(f"s_lshl_b32 s39, s2, 6")
        a(f"s_add_u32 s39, s39, {hx(WS_E1)}")
        a("s_add_u32 s44, s30, s39"); a("s_addc_u32 s45, s31, 0")
        a("s_add_u32 s46, s44, 0x200000"); a("s_addc_u32 s47, s45, 0")
        a("s_lshl_b32 s39, s2, 14")
        a(f"s_add_u32 s39, s39, {hx(WS_E1)}")
        a("s_add_u32 s48, s30, s39"); a("s_addc_u32 s49, s31, 0")
        a("s_add_u32 s50, s48, 8192"); a("s_addc_u32 s51, s49, 0")
        a("s_lshl_b32 s39, s2, 14")
        a(f"s_add_u32 s39, s39, {hx(WS_E2)}")
        a("s_add_u32 s54, s30, s39"); a("s_addc_u32 s55, s31, 0")
        a("s_add_u32 s56, s54, 8192"); a("s_addc_u32 s57, s55, 0")
        a("v_and_b32 v44, 0xff, v0")
        a("v_lshlrev_b32 v44, 3, v44")
        a("v_sub_u32 v44, 0x7ff, v44")
        a("v_lshrrev_b32 v45, 8, v0")
        a(f"v_mul_u32_u24 v45, {KT_STRIDE}, v45")
        a(f"v_add_u32 v45, {L_KT + 16}, v45")
        a("s_movk_i32 s39, 0x80")
        a("s_mov_b32 s41, 0xffffbd00")
        for i in range(0, 12, 2):
            a(f"v_subrev_u32 v46, {i}, v44")
            a(f"v_subrev_u32 v47, {i+1}, v44")
            a("v_max_i32 v48, s39, v46")
            a("v_max_i32 v49, s39, v47")
            a("v_cvt_f32_i32 v48, v48")
            a("v_cvt_f32_i32 v49, v49")
            a("v_min_i32 v46, s39, v46")
            a("v_min_i32 v47, s39, v47")
            a("v_cvt_pk_bf16_f32 v48, v48, v49")
            a("v_and_b32 v49, 0xffff, v48")
            a("v_add3_u32 v46, v46, v49, s41")
            a(f"v_lshl_add_u32 v{32+i}, v46, 1, v45")
            if i + 1 < 11:
                a("v_lshrrev_b32 v48, 16, v48")
                a("v_add3_u32 v47, v47, v48, s41")
                a(f"v_lshl_add_u32 v{32+i+1}, v47, 1, v45")
        a("s_waitcnt vmcnt(7) lgkmcnt(0)")
        self.stamp(1)
        a("s_add_u32 s33, s33, 0x9e3779b9")
        a("s_lshl_b32 s38, s38, 16")
        self.unpack8(44, 20)
        a(f"s_mul_i32 s39, s32, {RS}")
        a("v_add_u32 v16, s39, v17")
        a(f"ds_write_b128 v16, v[20:23] offset:{L_XB}")
        for i in range(4):
            a(f"v_pk_add_f32 v[{52+2*i}:{53+2*i}], v[{44+2*i}:{45+2*i}], s[38:39] op_sel_hi:[1,0] neg_lo:[0,1] neg_hi:[0,1]")
        a("v_pk_add_f32 v[60:61], v[52:53], v[54:55]")
        a("v_pk_mul_f32 v[62:63], v[52:53], v[52:53]")
        a("v_pk_add_f32 v[64:65], v[56:57], v[58:59]")
        a("v_pk_fma_f32 v[62:63], v[54:55], v[54:55], v[62:63]")
        a("v_pk_add_f32 v[60:61], v[60:61], v[64:65]")
        a("v_pk_fma_f32 v[62:63], v[56:57], v[56:57], v[62:63]")
        a("v_pk_fma_f32 v[62:63], v[58:59], v[58:59], v[62:63]")
        a("v_add_f32 v60, v60, v61")
        a("v_add_f32 v62, v62, v63")
        self.reduce_sum2(60, 62)
        a("v_readlane_b32 s42, v60, 63")
        a("v_readlane_b32 s43, v62, 63")
        a(f"v_mov_b32 v61, {hx(f2u(1/512))}")
        a("v_mul_f32 v52, s42, v61")
        a("v_mul_f32 v53, s43, v61")
        a("v_add_f32 v54, s38, v52")
        a("v_fma_f32 v53, -v52, v52, v53")
        a("v_max_f32 v53, 0, v53")
        a("v_cvt_pk_bf16_f32 v55, v54, v53")
        a("v_lshlrev_b32 v56, 16, v55")
        a("v_and_b32 v53, s62, v55")
        a(f"v_add_f32 v53, {hx(f2u(1e-5))}, v53")
        a("v_cvt_pk_bf16_f32 v53, v53, v53")
        a("v_lshlrev_b32 v53, 16, v53")
        a("v_sqrt_f32 v53, v53")
        a("v_cvt_pk_bf16_f32 v53, v53, v53")
        a("v_and_b32 v54, s62, v53")
        self.rcp_refined(58, 54, 57)
        a("v_and_b32 v55, 0xffff, v55")
        a("v_or_b32 v66, v55, v54")
        self.normalize8(44, 56, 58, 60)
        a(f"ds_write_b128 v16, v[60:63] offset:{L_XNB}")
        self.unpack8(44, 60)
        a("s_waitcnt vmcnt(6)")
        self.unpack8(52, 24)
        a("v_pk_mul_f32 v[64:65], v[44:45], v[52:53]")
        for i in range(1, 4):
            a(f"v_pk_fma_f32 v[64:65], v[{44+2*i}:{45+2*i}], v[{52+2*i}:{53+2*i}], v[64:65]")
        a("v_add_f32 v64, v64, v65")
        self.reduce_sum2(64, None)
        a("v_cvt_pk_bf16_f32 v64, v64, v64")
        a("v_mov_b32 v67, s33")
        a("s_lshl_b32 s39, s32, 1")
        a(f"s_add_u32 s39, s39, {L_RV}")
        a("v_mov_b32 v65, s39")
        a("s_lshl_b32 s39, s34, 3")
        a(f"s_add_u32 s39, s39, {WS_STATS}")
        a("v_mov_b32 v68, s39")
        a("s_mov_b32 exec_lo, 0"); a("s_mov_b32 exec_hi, 0x80000000")
        a("ds_write_b16 v65, v64")
        a("global_store_dwordx2 v68, v[66:67], s[30:31] sc1")
        a("s_mov_b64 exec, -1")
        a("s_waitcnt lgkmcnt(0)")
        a("s_barrier")
        self.stamp(2)
        a("v_and_b32 v16, 1, v0")
        a(f"v_mul_u32_u24 v16, {4*RS}, v16")
        a("v_and_b32 v17, 0x1fe, v0")
        a("v_add_u32 v16, v16, v17")
        a("v_and_b32 v17, 3, v0")
        a("v_lshlrev_b32 v18, 2, v17")
        for k in range(2):
            for r in range(4):
                a(f"ds_read_u16 v{44+4*k+r}, v16 offset:{L_XNB + r*RS + 512*k}")
        a(f"ds_read_b32 v5, v18 offset:{L_RV}")
        a("v_lshrrev_b32 v18, 2, v0")
        a("v_lshlrev_b32 v18, 14, v18")
        a("v_lshl_add_u32 v18, v17, 4, v18")
        a("v_mov_b32 v4, s33")
        a("v_mov_b32 v8, s33")
        a("s_waitcnt lgkmcnt(0)")
        a("v_lshl_or_b32 v2, v45, 16, v44")
        a("v_lshl_or_b32 v3, v47, 16, v46")
        a("v_lshl_or_b32 v6, v49, 16, v48")
        a("v_lshl_or_b32 v7, v51, 16, v50")
        a("v_mov_b32 v9, v5")
        a("global_store_dwordx4 v18, v[2:5], s[44:45] sc1")
        a("global_store_dwordx4 v18, v[6:9], s[46:47] sc1")
        for k in range(2):
            for r in range(4):
                a(f"ds_read_u16 v{44+4*k+r}, v16 offset:{L_XB + r*RS + 512*k}")
        self.stamp(3)
        a("s_waitcnt vmcnt(5)")
        a("s_lshr_b32 s41, s32, 2")
        a("s_lshr_b32 s42, s32, 1")
        a("s_xor_b32 s42, s42, s41")
        a("s_and_b32 s42, s42, 1")
        a("s_cmp_eq_u32 s41, 0")
        a("s_cselect_b32 s39, 16, 0")
        a("s_lshl_b32 s40, s40, s39")
        a("s_and_b32 s40, s40, s62")
        a("v_mov_b32 v52, s40")
        a("v_lshlrev_b32 v28, 16, v28")
        a("v_lshlrev_b32 v29, 16, v29")
        self.exp_precise(53, 52, 54, 55)
        self.exp_precise(56, 28, 57, 58)
        a("v_cvt_pk_bf16_f32 v53, v53, v56")
        a("s_waitcnt lgkmcnt(0)")
        a("v_lshl_or_b32 v10, v45, 16, v44")
        a("v_lshl_or_b32 v11, v47, 16, v46")
        a("v_lshl_or_b32 v12, v49, 16, v48")
        a("v_lshl_or_b32 v13, v51, 16, v50")
        a("v_and_b32 v56, s62, v53")
        a("v_lshlrev_b32 v53, 16, v53")
        a("v_mul_f32 v56, v56, v53")
        a("v_mul_f32 v57, v29, v53")
        a(f"v_mul_f32 v56, {hx(f2u(-1.4426950408889634))}, v56")
        a(f"v_mul_f32 v57, {hx(f2u(0.15915494309189535))}, v57")
        a("s_cmp_eq_u32 s42, 0")
        a(f"s_cselect_b32 s39, {hx(f2u(8.0))}, 1.0")
        a(f"s_mov_b32 s40, {hx(f2u(256.0))}")
        a(f"s_cselect_b32 s40, {hx(f2u(64.0))}, s40")
        for (ms, d) in (("s39", 60), ("s40", 62)):
            a(f"v_mul_f32 v44, {ms}, v56")
            a(f"v_mul_f32 v45, {ms}, v57")
            a("v_exp_f32 v44, v44")
            a("v_fract_f32 v45, v45")
            a("v_cos_f32 v46, v45")
            a("v_sin_f32 v47, v45")
            a(f"v_mul_f32 v{d}, v44, v46")
            a(f"v_mul_f32 v{d+1}, v44, v47")
        a("s_and_b32 s43, s32, 1")
        a("s_lshl_b32 s43, s43, 8")
        a(f"s_mul_i32 s41, s41, {TCH}")
        a(f"s_mul_i32 s39, s42, {32*TROW}")
        a("s_add_u32 s41, s41, s39")
        a("s_add_u32 s41, s41, s43")
        a(f"s_add_u32 s41, s41, {L_TAB}")
        a("v_lshl_add_u32 v16, v1, 2, s41")
        a("s_cmp_eq_u32 s42, 0")
        a("s_cbranch_scc0 L_gtab")
        self.etab()
        a("s_branch L_tabdone")
        a.label("L_gtab")
        self.gtab()
        a.label("L_tabdone")
        a("s_waitcnt lgkmcnt(0)")
        a("s_barrier")
        self.stamp(4)
        self.kmfma()
        a("s_waitcnt lgkmcnt(0)")
        a("s_barrier")
        self.stamp(5)
        self.copies()
        self.stamp(6)
        a("v_lshlrev_b32 v16, 4, v0")
        if self.probe:
            a("v_mov_b32 v17, 0x1ff0")
            self.probe_poll("e1", 17, 50, 44, self.sleep1)
        self.poll("e1", [(44, 16, 48, False), (48, 16, 50, False)], [46, 50], sleep=self.sleep1)
        self.stamp(7)
        a("v_and_b32 v17, 2, v0")
        a(f"v_mul_u32_u24 v17, {U_STRIDE}, v17")
        a("v_lshrrev_b32 v18, 2, v0")
        a("v_lshl_add_u32 v17, v18, 4, v17")
        a("v_and_b32 v19, 1, v0")
        a("v_lshl_add_u32 v17, v19, 3, v17")
        for k in range(2):
            a(f"ds_write_b64 v17, v[{44+4*k}:{45+4*k}] offset:{L_U + U_STRIDE + 512 + 2048*k}")
            a(f"ds_write_b64 v17, v[{44+4*k}:{45+4*k}] offset:{L_U + 512 + 8 + 2048*k}")
        a("v_and_b32 v19, 3, v0")
        a("v_lshlrev_b32 v19, 1, v19")
        a("v_lshl_add_u32 v18, v18, 3, v19")
        a("v_sub_u32 v18, 0xffff, v18")
        for k in range(2):
            src = 47 + 4*k
            for e in range(2):
                d = 52 + 2*k + e
                if e == 0: a(f"v_lshlrev_b32 v56, 16, v{src}")
                else: a(f"v_and_b32 v56, s62, v{src}")
                a("v_ashrrev_i32 v57, 31, v56")
                a("v_or_b32 v57, s63, v57")
                a("v_xor_b32 v56, v56, v57")
                a(f"v_subrev_u32 v57, {1024*k + e}, v18")
                a(f"v_bfi_b32 v{d}, s62, v56, v57")
        a("v_max_u32 v56, v52, v53"); a("v_min_u32 v57, v52, v53")
        a("v_max_u32 v58, v54, v55"); a("v_min_u32 v59, v54, v55")
        a("v_max_u32 v57, v57, v59")
        a("v_med3_u32 v57, v56, v58, v57")
        a("v_max_u32 v56, v56, v58")
        a("v_lshlrev_b32 v16, 3, v0")
        a(f"ds_write_b64 v16, v[56:57] offset:{L_KEYS}")
        a("v_lshlrev_b32 v14, 16, v14")
        a("v_lshlrev_b32 v15, 16, v15")
        a("s_cmp_lt_u32 s32, 4")
        a("s_cbranch_scc1 L_cpre")
        self.r_pre()
        a.label("L_cpre")
        a("s_waitcnt lgkmcnt(0)")
        a("s_barrier")
        self.stamp(8)
        a("s_cmp_lt_u32 s32, 4")
        a("s_cbranch_scc0 L_rwave")
        self.conv()
        a("s_branch L_b5")
        a.label("L_rwave")
        self.r_main()
        a.label("L_b5")
        a("s_waitcnt lgkmcnt(0)")
        a("s_barrier")
        self.stamp(10)
        self.final()
        a("s_branch L_fin")
        self.aux()
        a.label("L_fin")
        self.write_stamps()
        a.label("L_end")
        a("s_endpgm")
        a.label("L_codeend")
        return a.finish()

    def consts(self):
        a = self.a
        a("s_mov_b32 s60, 0x3fb8aa00")
        a(f"s_mov_b32 s61, {hx(f2u(1.4426950408889634 - struct.unpack('<f', struct.pack('<I', 0x3fb8aa00))[0]))}")
        a("s_mov_b32 s62, 0xffff0000")
        a("s_mov_b32 s63, 0x80000000")

    def emit_row(self, reg, row, neg=False):
        a = self.a
        t = 58 + (row & 1)
        a(f"v_cvt_pk_bf16_f32 v{t}, v{reg}, {'-' if neg else ''}v{reg+1}")
        a(f"ds_write_b32 v16, v{t} offset:{row*TROW}")

    def etab(self):
        a = self.a
        P = {1: 60}
        a("v_mov_b32 v58, 0x3f80")
        a("ds_write_b32 v16, v58 offset:0")
        self.emit_row(60, 1)
        Q = {1: 62, 2: 64, 3: 66}
        self.cmul(64, 62, 62, 64)
        self.cmul(66, 64, 62, 66)
        for j in range(2, 8):
            P[j] = 68 + 2 * (j - 2)
            self.cmul(P[j], P[j-1], 60, P[j])
            self.emit_row(P[j], j)
        for k in range(1, 4):
            self.emit_row(Q[k], 8 * k)
            for j in range(1, 8):
                t = 44 + 2 * (j & 3)
                self.cmul(t, P[j], Q[k], t)
                self.emit_row(t, 8 * k + j)

    def gtab(self):
        a = self.a
        a("v_lshlrev_b32 v30, 16, v30")
        a("v_lshlrev_b32 v31, 16, v31")
        a("v_add_f32 v53, v53, v53")
        G = {0: 64}
        a("v_mul_f32 v64, v30, v53")
        a("v_mul_f32 v65, v31, v53")
        self.emit_row(64, 0, True)
        F = {1: 62}
        for k in range(2, 9): F[k] = 80 + 2 * (k - 2)
        self.cmul(F[2], F[1], F[1], F[2])
        for j in range(1, 8):
            G[j] = 66 + 2 * (j - 1)
            self.cmul(G[j], G[j-1], 60, G[j])
            self.emit_row(G[j], j, True)
            if j == 1: self.cmul(F[3], F[2], F[1], F[3])
            if j == 2: self.cmul(F[4], F[2], F[2], F[4])
            if j == 3: self.cmul(F[5], F[4], F[1], F[5])
            if j == 4: self.cmul(F[6], F[4], F[2], F[6])
            if j == 5: self.cmul(F[7], F[4], F[3], F[7])
            if j == 6: self.cmul(F[8], F[4], F[4], F[8])
        rows = [(8, 0, 1), (9, 2, 1), (10, 4, 1), (11, 6, 1), (12, 0, 2), (13, 4, 2), (14, 0, 3), (15, 4, 3),
                (16, 0, 4), (17, 0, 5), (18, 0, 6), (19, 0, 7), (20, 0, 8)]
        for n, (row, g, f) in enumerate(rows):
            t = 44 + 2 * (n & 3)
            self.cmul(t, G[g], F[f], t)
            self.emit_row(t, row, True)

    def kmfma(self):
        a = self.a
        a("s_lshr_b32 s41, s32, 2")
        a("s_bfe_u32 s42, s32, 0x10001")
        a("s_and_b32 s43, s32, 1")
        a("v_and_b32 v16, 15, v1")
        a("v_lshrrev_b32 v17, 4, v1")
        a(f"v_mul_u32_u24 v18, {TROW}, v16")
        a("v_lshl_add_u32 v18, v17, 4, v18")
        a(f"s_mul_i32 s39, s41, {TCH}")
        a(f"s_add_u32 s39, s39, {L_TAB}")
        a(f"s_mul_i32 s40, s43, {16*TROW}")
        a("s_add_u32 s40, s40, s39")
        a("v_add_u32 v19, s40, v18")
        a(f"s_mul_i32 s40, s42, {16*TROW}")
        a("s_add_u32 s40, s40, s39")
        a(f"s_add_u32 s40, s40, {32*TROW}")
        a("v_add_u32 v18, s40, v18")
        for s in range(8):
            a(f"ds_read_b128 v[{44+8*s}:{47+8*s}], v19 offset:{64*s}")
            a(f"ds_read_b128 v[{48+8*s}:{51+8*s}], v18 offset:{64*s}")
        a("v_lshrrev_b32 v20, 2, v16")
        a("v_sub_u32 v20, 4, v20")
        a("v_min_u32 v20, 3, v20")
        a("v_add_u32 v21, 0xf8, v16")
        a("v_cmp_gt_u32 vcc, 8, v16")
        a("v_cndmask_b32 v21, v21, v16, vcc")
        a("v_bfe_u32 v22, v16, 1, 1")
        a("v_lshlrev_b32 v22, 6, v22")
        a("v_and_b32 v23, 1, v16")
        a("v_add_u32 v22, v22, v23")
        a("v_add_u32 v22, 0x180, v22")
        a("v_cmp_gt_u32 vcc, 12, v16")
        a("v_cndmask_b32 v21, v22, v21, vcc")
        a("s_cmp_eq_u32 s42, 0")
        a("s_cbranch_scc1 L_kth0")
        a("v_add_u32 v21, 16, v16")
        a("v_lshlrev_b32 v21, 5, v21")
        a("v_mov_b32 v20, 0")
        a.label("L_kth0")
        a("s_lshl_b32 s43, s43, 4")
        a("v_lshl_add_u32 v22, v17, 2, s43")
        a("v_lshlrev_b32 v22, v20, v22")
        a("v_add_u32 v21, v21, v22")
        a(f"s_mul_i32 s41, s41, {KT_STRIDE}")
        a(f"s_add_u32 s41, s41, {L_KT + 16}")
        a("v_lshl_add_u32 v21, v21, 1, s41")
        a("v_lshlrev_b32 v20, v20, 2")
        a("v_add_u32 v22, v21, v20")
        a("v_add_u32 v23, v22, v20")
        a("v_add_u32 v24, v23, v20")
        for s in range(8):
            a(f"s_waitcnt lgkmcnt({14-2*s})")
            c = "0" if s == 0 else "v[28:31]"
            a(f"v_mfma_f32_16x16x32_bf16 v[28:31], v[{44+8*s}:{47+8*s}], v[{48+8*s}:{51+8*s}], {c}")
        a("s_cmp_eq_u32 s42, 0")
        a("s_cselect_b32 s39, 16, 5")
        a("v_cmp_gt_u32 vcc, s39, v16")
        a("v_cvt_pk_bf16_f32 v28, v28, v29")
        a("v_cvt_pk_bf16_f32 v30, v30, v31")
        a("s_and_b64 exec, exec, vcc")
        a("ds_write_b16 v21, v28")
        a("ds_write_b16_d16_hi v22, v28")
        a("ds_write_b16 v23, v30")
        a("ds_write_b16_d16_hi v24, v30")
        a("s_mov_b64 exec, -1")

    def copies(self):
        a = self.a
        for i in range(11):
            a(f"ds_read_u16 v{44+i}, v{32+i}")
        a(f"s_mov_b32 s39, {L_KC}")
        a("v_and_b32 v16, 0xff, v0")
        a("v_lshlrev_b32 v16, 4, v16")
        a("v_lshrrev_b32 v17, 8, v0")
        a(f"v_mul_u32_u24 v17, {KC_CH}, v17")
        a(f"v_add3_u32 v16, v16, v17, s39")
        a("s_waitcnt lgkmcnt(0)")
        V = lambda i: 44 + i
        pk = lambda d, i: a(f"v_lshl_or_b32 v{d}, v{V(i+1)}, 16, v{V(i)}")
        for n in range(4): pk(56 + n, 2 * n)
        for n in range(4): pk(60 + n, 2 * n + 1)
        a(f"ds_write_b128 v16, v[56:59] offset:{3*KC_E + 16}")
        a(f"ds_write_b128 v16, v[60:63] offset:{2*KC_E + 16}")
        for n in range(3): a(f"v_mov_b32 v{64+n}, v{57+n}")
        pk(67, 8)
        for n in range(3): a(f"v_mov_b32 v{68+n}, v{61+n}")
        pk(71, 9)
        a(f"ds_write_b128 v16, v[64:67] offset:{1*KC_E + 16}")
        a(f"ds_write_b128 v16, v[68:71] offset:{0*KC_E + 16}")

    def r_pre(self):
        a = self.a
        a(f"s_cmp_ge_u32 s2, {NFFN}")
        a("s_cbranch_scc1 L_rpre_done")
        a("s_and_b32 s39, s2, 7")
        a("s_mul_i32 s39, s39, 14")
        a("s_lshr_b32 s40, s2, 3")
        a("s_add_u32 s39, s39, s40")
        a("s_lshl_b32 s40, s39, 14")
        a("s_add_u32 s36, s26, s40"); a("s_addc_u32 s37, s27, 0")
        a("v_subrev_u32 v16, 256, v0")
        a("v_lshlrev_b32 v16, 2, v16")
        for f in range(16):
            if f and f % 4 == 0:
                a("s_add_u32 s36, s36, 4096"); a("s_addc_u32 s37, s37, 0")
            a(f"global_load_dword v{72+f}, v16, s[36:37] offset:{1024*(f%4)}")
        a.label("L_rpre_done")

    def conv(self):
        a = self.a
        a("s_lshr_b32 s41, s32, 1")
        a("v_and_b32 v16, 15, v1")
        a("v_lshrrev_b32 v17, 4, v1")
        a("v_and_b32 v18, 3, v16")
        a(f"v_mul_u32_u24 v18, {KC_E}, v18")
        a("v_lshrrev_b32 v19, 2, v16")
        a("v_sub_u32 v19, v17, v19")
        a("v_lshl_add_u32 v18, v19, 4, v18")
        a(f"s_mul_i32 s39, s41, {KC_CH}")
        a(f"s_add_u32 s39, s39, {L_KC + 64}")
        a("v_add_u32 v20, s39, v18")
        a("v_and_b32 v18, 1, v16")
        a(f"v_mul_u32_u24 v18, {U_STRIDE}, v18")
        a("v_lshrrev_b32 v19, 1, v16")
        a("v_lshlrev_b32 v19, 6, v19")
        a("v_add_u32 v18, v18, v19")
        a("v_lshl_add_u32 v18, v17, 4, v18")
        a(f"s_mul_i32 s39, s41, {2*U_STRIDE}")
        a(f"s_add_u32 s39, s39, {L_U + 512}")
        a("v_add_u32 v21, s39, v18")
        a("v_lshrrev_b32 v18, 1, v16")
        a("v_lshl_add_u32 v18, v18, 2, v17")
        a("v_and_b32 v19, 1, v16")
        a("v_lshlrev_b32 v22, 14, v18")
        a("v_lshl_add_u32 v22, v19, 4, v22")
        a("v_lshlrev_b32 v23, 4, v18")
        a("v_lshl_add_u32 v23, v19, 3, v23")
        a("s_lshl_b32 s39, s2, 1")
        a("s_add_u32 s39, s39, s41")
        a("s_lshl_b32 s39, s39, 5")
        a(f"s_add_u32 s39, s39, {hx(WS_E2)}")
        a("s_add_u32 s52, s30, s39"); a("s_addc_u32 s53, s31, 0")
        a("s_lshl_b32 s39, s41, 12")
        a(f"s_add_u32 s39, s39, {L_YALL}")
        a("v_add_u32 v23, s39, v23")
        a("s_bitcmp1_b32 s32, 0")
        a("s_cbranch_scc1 L_convB")
        seqA = [(0,7),(1,6),(0,6),(0,2),(2,5),(1,5),(1,1),(3,4),(2,4),(2,0),(4,3),(3,3),(5,2),(4,2),(6,1),(5,1),(7,0),(6,0)]
        cA = {(m,i): m+i for (m,i) in seqA}
        self.conv_variant("A", seqA, [7, 6, 2])
        a("s_branch L_convdone")
        a.label("L_convB")
        seqB = [(0,5),(1,4),(0,4),(0,3),(0,1),(0,0),(2,3),(1,3),(1,2),(1,0),(3,2),(2,2),(2,1),(4,1),(3,1),(3,0),(5,0),(4,0)]
        self.conv_variant("B", seqB, [5, 4, 3, 1, 0])
        a.label("L_convdone")

    def conv_variant(self, nm, seq, cs):
        a = self.a
        AR = lambda m: 44 + 4 * m
        BR = lambda i: 76 + 4 * i
        ACC = {c: 108 + 4 * n for n, c in enumerate(cs)}
        ms = sorted({m for m, i in seq}); is_ = sorted({i for m, i in seq})
        rdA = lambda m: f"ds_read_b128 v[{AR(m)}:{AR(m)+3}], v20 offset:{64*(63-8*m)}"
        rdB = lambda i: f"ds_read_b128 v[{BR(i)}:{BR(i)+3}], v21 offset:{512*i}"
        first = {}
        for n, (m, i) in enumerate(seq):
            first.setdefault(("A", m), n); first.setdefault(("B", i), n)
        last = {}
        for n, (m, i) in enumerate(seq):
            last[("A", m)] = n; last[("B", i)] = n
        order0 = sorted(first, key=lambda k: first[k])
        for c in cs:
            for r in range(4): a(f"v_mov_b32 v{ACC[c]+r}, 0")
        for k in order0:
            a(rdA(k[1]) if k[0] == "A" else rdB(k[1]))
        a("v_subrev_u32 v20, 64, v20")
        a("v_subrev_u32 v21, 64, v21")
        a("s_mov_b32 s39, 8")
        reload_after = {}
        for k, n in last.items(): reload_after.setdefault(n, []).append(k)
        issue = []
        for n in range(len(seq)):
            for k in sorted(reload_after.get(n, []), key=lambda k: first[k]): issue.append((n, k))
        def younger(k, n_use, prologue):
            if prologue:
                pos = order0.index(k)
                cnt = len(order0) - 1 - pos + sum(1 for (n, kk) in issue if n < n_use)
            else:
                pos = [kk for (_, kk) in issue].index(k)
                cnt = len(issue) - 1 - pos + sum(1 for (n, kk) in issue if n < n_use)
            return cnt
        a("s_waitcnt lgkmcnt(0)")
        a.label(f"L_conv{nm}_loop")
        covered = -1
        waited = set()
        for n, (m, i) in enumerate(seq):
            needw = None
            for k in (("A", m), ("B", i)):
                if first[k] == n:
                    y = min(younger(k, n, False), 15)
                    needw = y if needw is None else min(needw, y)
            if needw is not None:
                if n not in waited:
                    a(f"s_waitcnt lgkmcnt({needw})")
            c = m + i
            a(f"v_mfma_f32_16x16x32_bf16 v[{ACC[c]}:{ACC[c]+3}], v[{AR(m)}:{AR(m)+3}], v[{BR(i)}:{BR(i)+3}], v[{ACC[c]}:{ACC[c]+3}]")
            for k in sorted(reload_after.get(n, []), key=lambda k: first[k]):
                a(rdA(k[1]) if k[0] == "A" else rdB(k[1]))
        a("v_subrev_u32 v20, 64, v20")
        a("v_subrev_u32 v21, 64, v21")
        a("s_sub_u32 s39, s39, 1")
        a("s_cmp_lg_u32 s39, 0")
        a(f"s_cbranch_scc1 L_conv{nm}_loop")
        self.stamp(9)
        a("s_waitcnt lgkmcnt(0)")
        for n, c in enumerate(cs):
            g = 44 + 4 * n
            a(f"v_cvt_pk_bf16_f32 v{g}, v{ACC[c]}, v{ACC[c]+1}")
            a(f"v_cvt_pk_bf16_f32 v{g+1}, v{ACC[c]+2}, v{ACC[c]+3}")
            a(f"v_mov_b32 v{g+2}, s33")
            a(f"v_mov_b32 v{g+3}, 0")
            a(f"v_add_u32 v{76+n}, {hx(c*32*16384)}, v22")
            a(f"global_store_dwordx4 v{76+n}, v[{g}:{g+3}], s[52:53] sc1")
            a(f"ds_write_b64 v23, v[{g}:{g+1}] offset:{512*c}")

    def r_main(self):
        a = self.a
        a(f"s_cmp_ge_u32 s2, {NFFN}")
        a("s_cbranch_scc1 L_b5")
        a("s_waitcnt vmcnt(0)")
        a("s_mov_b32 s39, 0x05040100")
        a("s_mov_b32 s40, 0x07060302")
        for fp in range(8):
            a(f"v_perm_b32 v{88+2*fp}, v{73+2*fp}, v{72+2*fp}, s39")
            a(f"v_perm_b32 v{89+2*fp}, v{73+2*fp}, v{72+2*fp}, s40")
        a(f"v_mov_b32 v16, {L_FLAG}")
        a("s_mov_b32 s41, 0")
        a.label("L_hpoll")
        a("ds_read_b32 v17, v16")
        a("s_add_u32 s41, s41, 1")
        a(f"s_cmp_gt_u32 s41, {POLL_MAX*10}")
        a("s_cbranch_scc1 L_hdone")
        a("s_waitcnt lgkmcnt(0)")
        a("v_cmp_eq_u32 vcc, 0, v17")
        a("s_cbranch_vccz L_hdone")
        a("s_sleep 1")
        a("s_branch L_hpoll")
        a.label("L_hdone")
        a(f"v_mov_b32 v16, {L_H}")
        for n in range(4):
            a(f"ds_read_b128 v[{44+4*n}:{47+4*n}], v16 offset:{16*n}")
        for n in range(4): a(f"v_mov_b32 v{104+n}, 0")
        a("s_waitcnt lgkmcnt(0)")
        a("v_mov_b32 v108, 0"); a("v_mov_b32 v109, 0")
        for fp in range(8):
            for tok in range(2):
                for cc in range(2):
                    d = 104 + 4 * tok + cc
                    a(f"v_dot2_f32_bf16 v{d}, v{88+2*fp+cc}, v{44+8*tok+fp}, v{d}")
        a("s_and_b32 s39, s2, 7")
        a("s_mul_i32 s39, s39, 14")
        a("s_lshr_b32 s40, s2, 3")
        a("s_add_u32 s39, s39, s40")
        a("s_lshl_b32 s39, s39, 5")
        a(f"s_add_u32 s39, s39, {hx(WS_E3)}")
        a("s_add_u32 s36, s30, s39"); a("s_addc_u32 s37, s31, 0")
        a("v_subrev_u32 v16, 256, v0")
        a("v_lshlrev_b32 v16, 12, v16")
        a("v_mov_b32 v106, s33"); a("v_mov_b32 v107, 0")
        a("v_mov_b32 v110, s33"); a("v_mov_b32 v111, 0")
        a("global_store_dwordx4 v16, v[104:107], s[36:37] sc1")
        a("global_store_dwordx4 v16, v[108:111], s[36:37] offset:16 sc1")

    def final(self):
        a = self.a
        a("v_lshlrev_b32 v16, 4, v0")
        if self.sleep2: a(f"s_sleep {self.sleep2}")
        if self.probe:
            a("v_mov_b32 v17, 0x1ff0")
            self.probe_poll("e2", 17, 56, 44, self.sleep1)
        self.poll("e2", [(44, 16, 54, False), (48, 16, 56, False)], [46, 50], sleep=self.sleep1)
        self.stamp(11)
        a(f"v_mov_b32 v17, {L_IDX}")
        a("ds_read_b64 v[52:53], v17")
        a("v_and_b32 v17, 1, v0")
        a("v_bfe_u32 v18, v0, 1, 1")
        a("v_lshlrev_b32 v19, 2, v17")
        a("v_lshl_add_u32 v19, v18, 1, v19")
        a("s_lshl_b32 s39, s2, 3")
        a("v_add_u32 v19, s39, v19")
        a("v_lshlrev_b32 v20, 10, v19")
        a("v_lshrrev_b32 v21, 2, v0")
        a("v_lshl_add_u32 v20, v21, 2, v20")
        a("v_cmp_eq_u32 s[66:67], 1, v18")
        for k in range(2):
            y = 44 + 4 * k; xn = 2 + 4 * k; x = 10 + 2 * k; dsk = 14 + k
            o = 56
            for r in range(4):
                half = r & 1; w = r >> 1
                un = (lambda d, s: a(f"v_and_b32 v{d}, s62, v{s}")) if half else (lambda d, s: a(f"v_lshlrev_b32 v{d}, 16, v{s}"))
                un(60 + r, xn + w); un(64 + r, y + w); un(68 + r, x + w)
            for r in range(4): a(f"v_mul_f32 v{72+r}, v{60+r}, v{dsk}")
            a("v_cvt_pk_bf16_f32 v72, v72, v73"); a("v_cvt_pk_bf16_f32 v74, v74, v75")
            a("v_and_b32 v73, s62, v72"); a("v_lshlrev_b32 v72, 16, v72")
            a("v_and_b32 v75, s62, v74"); a("v_lshlrev_b32 v74, 16, v74")
            for r in range(4): a(f"v_add_f32 v{72+r}, v{64+r}, v{72+r}")
            a("v_cvt_pk_bf16_f32 v72, v72, v73"); a("v_cvt_pk_bf16_f32 v74, v74, v75")
            a("v_and_b32 v73, s62, v72"); a("v_lshlrev_b32 v72, 16, v72")
            a("v_and_b32 v75, s62, v74"); a("v_lshlrev_b32 v74, 16, v74")
            for r in range(4): a(f"v_add_f32 v{72+r}, v{68+r}, v{72+r}")
            a("v_cvt_pk_bf16_f32 v72, v72, v73"); a("v_cvt_pk_bf16_f32 v74, v74, v75")
            a("v_and_b32 v73, s62, v72"); a("v_lshlrev_b32 v72, 16, v72")
            a("v_and_b32 v75, s62, v74"); a("v_lshlrev_b32 v74, 16, v74")
            for r in range(4): a(f"v_add_f32 v{72+r}, v{72+r}, v{60+r}")
            a("v_cvt_pk_bf16_f32 v76, v72, v73")
            a("v_cvt_pk_bf16_f32 v77, v74, v75")
            a("v_cndmask_b32 v78, v77, v76, s[66:67]")
            a("v_cndmask_b32 v79, v76, v77, s[66:67]")
            a("v_mov_b32_dpp v78, v78 quad_perm:[2,3,0,1] row_mask:0xf bank_mask:0xf")
            a("v_cndmask_b32 v80, v79, v78, s[66:67]")
            a("v_cndmask_b32 v81, v78, v79, s[66:67]")
            a("s_mov_b32 s39, 0x05040100")
            a("s_mov_b32 s40, 0x07060302")
            a(f"v_perm_b32 v{82+2*k}, v81, v80, s39")
            a(f"v_perm_b32 v{83+2*k}, v81, v80, s40")
        a("s_waitcnt lgkmcnt(0)")
        for e in range(2):
            a(f"v_add_u32 v21, {e}, v19")
            a("v_cmp_ne_u32 vcc, v21, v52")
            a("v_cmp_ne_u32 s[42:43], v21, v53")
            a("s_and_b64 exec, vcc, s[42:43]")
            a(f"s_cbranch_execz L_fskip{e}")
            a(f"global_store_dword v20, v{82+e}, s[28:29] offset:{1024*e}")
            a(f"global_store_dword v20, v{84+e}, s[28:29] offset:{1024*e+512}")
            a.label(f"L_fskip{e}")
            a("s_mov_b64 exec, -1")

    def aux(self):
        a = self.a
        a.label("L_aux")
        a("s_getpc_b64 s[42:43]")
        a.label("L_pc")
        a(f"s_sub_u32 s42, s42, L_pc-{KN}")
        a("s_subb_u32 s43, s43, 0")
        a("v_lshlrev_b32 v16, 7, v1")
        a("v_mov_b32 v19, s43")
        a("v_add_co_u32 v18, vcc, s42, v16")
        a("v_addc_co_u32 v19, vcc, 0, v19, vcc")
        for n in range(3):
            a(f"v_cmp_gt_u32 vcc, L_codeend-{KN}, v16")
            a("s_and_b64 exec, exec, vcc")
            a(f"s_cbranch_execz L_pfdone")
            a("global_load_dword v20, v[18:19], off")
            a("v_add_u32 v16, 0x2000, v16")
            a("v_add_co_u32 v18, vcc, 0x2000, v18")
            a("v_addc_co_u32 v19, vcc, 0, v19, vcc")
        a.label("L_pfdone")
        a("s_mov_b64 exec, -1")
        for r in range(44, 48): a(f"v_mov_b32 v{r}, 0")
        a("v_lshlrev_b32 v16, 4, v1")
        a("s_mov_b32 exec_hi, 1")
        for n in range(4):
            a(f"ds_write_b128 v16, v[44:47] offset:{L_U + n*U_STRIDE}")
        a("s_mov_b64 exec, 1")
        a(f"ds_write_b128 v16, v[44:47] offset:{L_KT}")
        a(f"ds_write_b128 v16, v[44:47] offset:{L_KT + KT_STRIDE}")
        a(f"ds_write_b128 v16, v[44:47] offset:{L_FLAG}")
        a("s_mov_b64 exec, -1")
        a("s_waitcnt lgkmcnt(0)")
        a("s_load_dword s33, s[30:31], 0")
        self.consts()
        a("s_waitcnt lgkmcnt(0)")
        a("s_add_u32 s33, s33, 0x9e3779b9")
        a("s_barrier")
        a(f"s_cmp_ge_u32 s2, {NFFN}")
        a("s_cbranch_scc1 L_aux_nodma")
        a("s_and_b32 s39, s2, 7")
        a("s_mul_i32 s39, s39, 14")
        a("s_lshr_b32 s40, s2, 3")
        a("s_add_u32 s39, s39, s40")
        a("s_lshl_b32 s39, s39, 5")
        a("v_lshrrev_b32 v16, 1, v1")
        a("v_mul_u32_u24 v16, 3584, v16")
        a("v_and_b32 v17, 1, v1")
        a("v_lshl_add_u32 v16, v17, 4, v16")
        a("v_add_u32 v16, s39, v16")
        a(f"s_mov_b32 s40, {L_WG}")
        a("s_mov_b32 s41, 16")
        a.label("L_dma")
        a("s_mov_b32 m0, s40")
        a("s_add_u32 s39, s40, 16384")
        a("global_load_lds_dwordx4 v16, s[22:23]")
        a("s_mov_b32 m0, s39")
        a("s_add_u32 s40, s40, 1024")
        a("global_load_lds_dwordx4 v16, s[24:25]")
        a(f"v_add_u32 v16, {32*3584}, v16")
        a("s_sub_u32 s41, s41, 1")
        a("s_cmp_lg_u32 s41, 0")
        a("s_cbranch_scc1 L_dma")
        a.label("L_aux_nodma")
        a("s_barrier")
        a("s_barrier")
        for r in range(44, 48): a(f"v_mov_b32 v{r}, 0")
        a("v_mul_u32_u24 v16, 171, v1")
        a("v_lshrrev_b32 v16, 9, v16")
        a("v_mul_u32_u24 v17, 3, v16")
        a("v_sub_u32 v17, v1, v17")
        a(f"v_mul_u32_u24 v16, {KC_E}, v16")
        a("v_lshl_add_u32 v16, v17, 4, v16")
        a(f"v_add_u32 v16, {L_KC}, v16")
        a("s_mov_b32 exec_lo, 0xffffff"); a("s_mov_b32 exec_hi, 0")
        a(f"ds_write_b128 v16, v[44:47] offset:{2*2056}")
        a("s_mov_b64 exec, -1")
        a("s_waitcnt lgkmcnt(0)")
        a("s_barrier")
        self.stamp(8)
        a("s_cmp_lg_u32 s2, 0")
        a("s_cbranch_scc1 L_noepoch")
        a("v_mov_b32 v16, 0"); a("v_mov_b32 v17, s33")
        a("s_mov_b64 exec, 1")
        a("global_store_dword v16, v17, s[30:31] sc1")
        a("s_mov_b64 exec, -1")
        a.label("L_noepoch")
        a("v_lshlrev_b32 v16, 6, v1")
        for n in range(4):
            a(f"ds_read_b128 v[{44+4*n}:{47+4*n}], v16 offset:{L_KEYS + 16*n}")
        a("s_waitcnt lgkmcnt(0)")
        for n in range(1, 8):
            a(f"v_max_u32 v45, v45, v{45+2*n}")
            a(f"v_med3_u32 v45, v44, v{44+2*n}, v45")
            a(f"v_max_u32 v44, v44, v{44+2*n}")
        a("v_mov_b32 v46, v44")
        self.reduce_maxu(46)
        a("v_readlane_b32 s44, v46, 63")
        a("v_cmp_eq_u32 vcc, s44, v44")
        a("v_cndmask_b32 v46, v44, v45, vcc")
        self.reduce_maxu(46)
        a("v_readlane_b32 s45, v46, 63")
        a("s_and_b32 s46, s44, 0xffff"); a("s_sub_u32 s46, 0xffff, s46")
        a("s_and_b32 s47, s45, 0xffff"); a("s_sub_u32 s47, 0xffff, s47")
        a("s_min_u32 s46, s46, 2047"); a("s_min_u32 s47, s47, 2047")
        a("v_mov_b32 v46, s46"); a("v_mov_b32 v47, s47")
        a(f"v_mov_b32 v16, {L_IDX}")
        a("s_mov_b64 exec, 1")
        a("ds_write_b64 v16, v[46:47]")
        a("s_mov_b64 exec, -1")
        self.stamp(1)
        a("v_and_b32 v24, 1, v1")
        a("v_bfe_u32 v25, v1, 1, 1")
        a("v_cmp_eq_u32 s[66:67], 1, v24")
        a("v_cndmask_b32 v26, v46, v47, s[66:67]")
        a("s_lshl_b32 s39, s2, 1")
        a("v_add_u32 v27, s39, v25")
        a("v_lshlrev_b32 v27, 1, v27")
        a("v_lshl_add_u32 v28, v26, 10, v27")
        a("global_load_ushort v29, v28, s[4:5]")
        a("global_load_ushort v30, v27, s[16:17]")
        a(f"s_cmp_ge_u32 s2, {NFFN}")
        a("s_cbranch_scc1 L_aux_b5")
        self.ffn1()
        a.label("L_aux_b5")
        a("s_waitcnt lgkmcnt(0)")
        a("s_barrier")
        self.stamp(10)
        self.ffn_final()
        a("s_branch L_fin")

    def ffn1(self):
        a = self.a
        a("s_lshl_b32 s39, s46, 10"); a("s_lshl_b32 s40, s47, 10")
        a("v_lshlrev_b32 v16, 4, v1")
        a("v_add_u32 v17, s39, v16"); a("v_add_u32 v18, s40, v16")
        a("global_load_dwordx4 v[32:35], v17, s[4:5]")
        a("global_load_dwordx4 v[36:39], v18, s[4:5]")
        a("s_lshl_b32 s39, s46, 3"); a(f"s_add_u32 s39, s39, {WS_STATS}")
        a("s_lshl_b32 s40, s47, 3"); a(f"s_add_u32 s40, s40, {WS_STATS}")
        a("v_mov_b32 v17, s39"); a("v_mov_b32 v18, s40")
        a("s_mov_b32 s41, 0")
        a.label("L_stpoll")
        a("global_load_dwordx2 v[40:41], v17, s[30:31] sc1")
        a("global_load_dwordx2 v[42:43], v18, s[30:31] sc1")
        a("s_add_u32 s41, s41, 1")
        a(f"s_cmp_gt_u32 s41, {POLL_MAX}")
        a("s_cbranch_scc1 L_stdone")
        a("s_waitcnt vmcnt(0)")
        a("v_cmp_ne_u32 vcc, s33, v41")
        a("v_cmp_ne_u32 s[42:43], s33, v43")
        a("s_or_b64 vcc, vcc, s[42:43]")
        a("s_cbranch_vccnz L_stpoll")
        a.label("L_stdone")
        a("s_waitcnt vmcnt(0)")
        self.stamp(2)
        a("v_lshrrev_b32 v16, 2, v1")
        a("v_lshlrev_b32 v16, 6, v16")
        a("v_and_b32 v17, 1, v1")
        a("v_lshl_add_u32 v16, v17, 5, v16")
        a("v_bfe_u32 v17, v1, 1, 1")
        a("v_lshl_add_u32 v16, v17, 3, v16")
        for tok in range(2):
            st = 40 + 2 * tok
            a(f"v_lshlrev_b32 v56, 16, v{st}")
            a(f"v_and_b32 v54, s62, v{st}")
            self.rcp_refined(58, 54, 57)
            self.unpack8(44, 32 + 4 * tok)
            self.normalize8(44, 56, 58, 60)
            a(f"ds_write_b64 v16, v[60:61] offset:{L_XS + 1024*tok}")
            a(f"ds_write_b64 v16, v[62:63] offset:{L_XS + 1024*tok + 16}")
        a("v_and_b32 v16, 1, v1")
        a("v_lshlrev_b32 v16, 10, v16")
        a("v_lshrrev_b32 v17, 4, v1")
        a("v_lshl_add_u32 v16, v17, 4, v16")
        a("v_bfe_u32 v18, v1, 2, 2")
        a("v_lshl_add_u32 v18, v17, 2, v18")
        a("v_lshlrev_b32 v18, 5, v18")
        a("v_and_b32 v19, 3, v1")
        a("v_lshl_add_u32 v18, v19, 3, v18")
        a(f"v_add_u32 v18, {L_WG}, v18")
        a("s_waitcnt lgkmcnt(0)")
        def rd(s, b):
            a(f"ds_read_b128 v[{b}:{b+3}], v16 offset:{L_XS + 64*s}")
            a(f"ds_read_b64_tr_b16 v[{b+4}:{b+5}], v18 offset:{1024*s}")
            a(f"ds_read_b64_tr_b16 v[{b+6}:{b+7}], v18 offset:{1024*s + 512}")
            a(f"ds_read_b64_tr_b16 v[{b+8}:{b+9}], v18 offset:{16384 + 1024*s}")
            a(f"ds_read_b64_tr_b16 v[{b+10}:{b+11}], v18 offset:{16384 + 1024*s + 512}")
        B0 = [64, 76, 88]
        rd(0, B0[0]); rd(1, B0[1])
        for s in range(16):
            if s + 2 < 16: rd(s + 2, B0[(s + 2) % 3])
            n_after = 5 * min(2, 15 - s)
            a(f"s_waitcnt lgkmcnt({n_after})")
            b = B0[s % 3]
            cg = "0" if s == 0 else "v[44:47]"; cu = "0" if s == 0 else "v[48:51]"
            a(f"v_mfma_f32_16x16x32_bf16 v[44:47], v[{b+4}:{b+7}], v[{b}:{b+3}], {cg}")
            a(f"v_mfma_f32_16x16x32_bf16 v[48:51], v[{b+8}:{b+11}], v[{b}:{b+3}], {cu}")
        self.stamp(3)
        a("v_cvt_pk_bf16_f32 v52, v44, v45"); a("v_cvt_pk_bf16_f32 v53, v46, v47")
        a("v_cvt_pk_bf16_f32 v54, v48, v49"); a("v_cvt_pk_bf16_f32 v55, v50, v51")
        for r in range(4):
            src = 52 + (r >> 1)
            if r & 1: a(f"v_and_b32 v{44+r}, s62, v{src}"); a(f"v_and_b32 v{48+r}, s62, v{src+2}")
            else: a(f"v_lshlrev_b32 v{44+r}, 16, v{src}"); a(f"v_lshlrev_b32 v{48+r}, 16, v{src+2}")
        for r in range(4): a(f"v_mul_f32 v{56+r}, {hx(f2u(-1.4426950408889634))}, v{44+r}")
        for r in range(4): a(f"v_exp_f32 v{56+r}, v{56+r}")
        for r in range(4): a(f"v_add_f32 v{56+r}, 1.0, v{56+r}")
        for r in range(4): a(f"v_rcp_f32 v{56+r}, v{56+r}")
        for r in range(4): a(f"v_mul_f32 v{44+r}, v{44+r}, v{56+r}")
        a("v_cvt_pk_bf16_f32 v52, v44, v45"); a("v_cvt_pk_bf16_f32 v53, v46, v47")
        a("v_lshlrev_b32 v44, 16, v52"); a("v_and_b32 v45, s62, v52")
        a("v_lshlrev_b32 v46, 16, v53"); a("v_and_b32 v47, s62, v53")
        for r in range(4): a(f"v_mul_f32 v{44+r}, v{44+r}, v{48+r}")
        a("v_cvt_pk_bf16_f32 v52, v44, v45"); a("v_cvt_pk_bf16_f32 v53, v46, v47")
        a("v_and_b32 v16, 15, v1")
        a("v_lshrrev_b32 v17, 4, v1")
        a("v_lshlrev_b32 v18, 5, v16")
        a("v_lshl_add_u32 v18, v17, 3, v18")
        a("v_cmp_gt_u32 vcc, 2, v16")
        a("s_and_b64 exec, exec, vcc")
        a(f"ds_write_b64 v18, v[52:53] offset:{L_H}")
        a("s_mov_b64 exec, 1")
        a("s_waitcnt lgkmcnt(0)")
        a(f"v_mov_b32 v16, {L_FLAG}"); a("v_mov_b32 v17, 1")
        a("ds_write_b32 v16, v17")
        a("s_mov_b64 exec, -1")

    def ffn_final(self):
        a = self.a
        a("s_lshl_b32 s39, s2, 12")
        a(f"s_add_u32 s39, s39, {hx(WS_E3)}")
        a("s_add_u32 s58, s30, s39"); a("s_addc_u32 s59, s31, 0")
        a("v_lshlrev_b32 v16, 4, v1")
        for k in range(1, 4): a(f"v_add_u32 v{16+k}, {1024*k}, v16")
        a(f"v_mul_u32_u24 v20, {2*U_STRIDE}, v25")
        a("v_lshl_add_u32 v20, v26, 1, v20")
        a(f"ds_read_u16 v31, v20 offset:{L_U + U_STRIDE + 512}")
        a("v_lshlrev_b32 v20, 12, v25")
        a("v_lshl_add_u32 v20, v26, 1, v20")
        a(f"v_add_u32 v20, {L_YALL}, v20")
        a("ds_read_u16 v32, v20")
        a("s_mov_b32 s64, -1"); a("s_mov_b32 s65, 0")
        for r in range(56, 60): a(f"v_mov_b32 v{r}, 0")
        if self.sleep2: a(f"s_sleep {self.sleep2}")
        self.poll("e3", [(44, 16, 58, False), (48, 17, 58, False), (52, 18, 58, False), (56, 19, 58, True)], [46, 50, 54, 58], sleep=self.sleep1)
        self.stamp(11)
        a("s_mov_b32 exec_lo, 0")
        a("v_mov_b32 v56, 0"); a("v_mov_b32 v57, 0")
        a("s_mov_b64 exec, -1")
        a("v_add_f32 v44, v44, v48"); a("v_add_f32 v45, v45, v49")
        a("v_add_f32 v52, v52, v56"); a("v_add_f32 v53, v53, v57")
        a("v_add_f32 v44, v44, v52"); a("v_add_f32 v45, v45, v53")
        for ctl in ("row_ror:2", "row_ror:4", "row_ror:8"):
            a(f"v_add_f32_dpp v44, v44, v44 {ctl} row_mask:0xf bank_mask:0xf")
            a(f"v_add_f32_dpp v45, v45, v45 {ctl} row_mask:0xf bank_mask:0xf")
        for sw in ("v_permlane16_swap_b32", "v_permlane32_swap_b32"):
            a("v_mov_b32 v46, v44"); a("v_mov_b32 v47, v45")
            a(f"{sw} v44, v46"); a(f"{sw} v45, v47")
            a("v_add_f32 v44, v44, v46"); a("v_add_f32 v45, v45, v47")
        a("v_cmp_eq_u32 vcc, 1, v25")
        a("v_cndmask_b32 v44, v44, v45, vcc")
        a("v_mov_b32 v46, s44"); a("v_mov_b32 v47, s45")
        a("v_cndmask_b32 v46, v46, v47, s[66:67]")
        a("v_and_b32 v46, s62, v46")
        a("v_ashrrev_i32 v47, 31, v46")
        a("v_not_b32 v47, v47")
        a("v_or_b32 v47, s63, v47")
        a("v_xor_b32 v46, v46, v47")
        a("v_and_b32 v46, s62, v46")
        a(f"v_mul_f32 v46, {hx(f2u(-1.4426950408889634))}, v46")
        a("v_exp_f32 v46, v46")
        a("v_add_f32 v46, 1.0, v46")
        a("v_rcp_f32 v46, v46")
        rnd = lambda r: (a(f"v_cvt_pk_bf16_f32 v{r}, v{r}, v{r}"), a(f"v_lshlrev_b32 v{r}, 16, v{r}"))
        rnd(46); rnd(44)
        a("v_mul_f32 v44, v44, v46"); rnd(44)
        a("s_waitcnt vmcnt(0) lgkmcnt(0)")
        for r in (29, 30, 31, 32): a(f"v_lshlrev_b32 v{r}, 16, v{r}")
        a("v_add_f32 v44, v31, v44"); rnd(44)
        a("v_mul_f32 v45, v31, v30"); rnd(45)
        a("v_add_f32 v45, v32, v45"); rnd(45)
        a("v_add_f32 v45, v29, v45"); rnd(45)
        a("v_add_f32 v45, v45, v44")
        a("v_cvt_pk_bf16_f32 v45, v45, v45")
        a("s_mov_b64 exec, 15")
        a("global_store_short v28, v45, s[28:29]")
        a("s_mov_b64 exec, -1")

    def write_stamps(self):
        if not self.stamps: return
        a = self.a
        n = 12
        a("s_waitcnt vmcnt(0) lgkmcnt(0)")
        a("s_memrealtime s[94:95]")
        a("s_waitcnt lgkmcnt(0)")
        a("s_and_b32 s39, s32, 3")
        a("s_cmp_lg_u32 s39, 0")
        a("s_cbranch_scc1 L_end")
        a("s_lshr_b32 s39, s32, 2")
        a(f"s_mul_i32 s39, s39, {13*8}")
        a(f"s_mul_i32 s40, s2, {3*13*8}")
        a("s_add_u32 s39, s39, s40")
        a(f"s_add_u32 s39, s39, {hx(WS_STAMP)}")
        a("s_add_u32 s36, s30, s39"); a("s_addc_u32 s37, s31, 0")
        a("v_mov_b32 v30, 0")
        a("s_mov_b64 exec, 1")
        for i in range(13):
            a(f"v_mov_b32 v32, s{70+2*i}"); a(f"v_mov_b32 v33, s{71+2*i}")
            a(f"global_store_dwordx2 v30, v[32:33], s[36:37] offset:{8*i}")
            a("s_nop 1")

HEADER = f"""; Fused LayerNorm + S4D causal convolution + expert-choice SwiGLU FFN.
; @launch grid=(256,1,1) block=(576,1,1) lds={LDS_SIZE}
.amdgcn_target "amdgcn-amd-amdhsa--gfx950"
.text
.globl {KN}
.p2align 8
.type {KN},@function
"""
FOOTER = f"""
.section .rodata,"a"
.p2align 6
.amdhsa_kernel {KN}
  .amdhsa_next_free_vgpr 168
  .amdhsa_next_free_sgpr 102
  .amdhsa_accum_offset 168
  .amdhsa_group_segment_fixed_size 0
  .amdhsa_kernarg_size 120
  .amdhsa_user_sgpr_count 2
  .amdhsa_user_sgpr_kernarg_segment_ptr 1
  .amdhsa_system_sgpr_workgroup_id_x 1
  .amdhsa_float_denorm_mode_32 3
.end_amdhsa_kernel
"""

def make(path, **kw):
    g = Gen(**kw)
    body = g.build()
    open(path, "w").write(HEADER + body + FOOTER)
    return g

if __name__ == "__main__":
    out = sys.argv[1]
    kw = {}
    for x in sys.argv[2:]:
        k, v = x.split("=")
        kw[k] = int(v)
    g = make(out, **kw)
    print("nops inserted:", g.a.nnops, "LDS", LDS_SIZE)
```

```python
import sys, struct
from asmlib import Asm

KN = "parallel_sum__ssm_conv_s4d__moe_arch_mod__prompt_kernel"

def f2u(x): return struct.unpack("<I", struct.pack("<f", x))[0]
def hx(x): return hex(x & 0xFFFFFFFF)

RS = 1040
L_XB = 0
L_XNB = L_XB + 8 * RS
L_RV = L_XNB + 8 * RS
L_IDX = L_RV + 16
L_FLAG = L_IDX + 32
L_H = L_FLAG + 16
L_KEYS = L_H + 64 + 16
L_KT = L_KEYS + 4096
KT_STRIDE = 16 + 1344 + 48
L_U = L_KT + 2 * KT_STRIDE
U_STRIDE = 4640
L_XS = L_U + 4 * U_STRIDE
L_WG = L_XS + 2048
L_WU = L_WG + 16384
L_TAB = L_WU + 16384
TROW = 544
TCH = 64 * TROW
L_KC = L_TAB
KC_E = 4160
KC_CH = 4 * KC_E
L_YALL = L_TAB + 2 * KC_CH
LDS_SIZE = L_TAB + 2 * TCH
assert L_U % 16 == 0 and L_TAB % 16 == 0 and L_KT % 16 == 0 and L_KEYS % 16 == 0 and L_XS % 16 == 0
assert LDS_SIZE <= 160 * 1024

WS_STATS = 0x1000
WS_E1 = 0x100000
WS_E2 = 0x500000
WS_E3 = 0x900000
WS_STAMP = 0x8000000
NFFN = 112
POLL_MAX = 20000

class Gen:
    def __init__(self, stamps=False, dump=None, sleep1=4, sleep2=20, probe=True, perturb=0):
        self.a = Asm(); self.stamps = stamps; self.dump = dump
        self.sleep1 = sleep1; self.sleep2 = sleep2; self.probe = probe
        self.nst = 0; self.perturb = perturb

    def stamp(self, i):
        if self.stamps:
            self.a(f"s_memrealtime s[{70+2*i}:{71+2*i}]")

    def reduce_sum2(self, va, vb):
        a = self.a
        for ctl in ("row_shr:1", "row_shr:2", "row_shr:4", "row_shr:8"):
            a(f"v_add_f32_dpp v{va}, v{va}, v{va} {ctl} row_mask:0xf bank_mask:0xf bound_ctrl:1")
            if vb is not None: a(f"v_add_f32_dpp v{vb}, v{vb}, v{vb} {ctl} row_mask:0xf bank_mask:0xf bound_ctrl:1")
        for ctl in ("row_bcast:15 row_mask:0xa", "row_bcast:31 row_mask:0xc"):
            a(f"v_add_f32_dpp v{va}, v{va}, v{va} {ctl} bank_mask:0xf")
            if vb is not None: a(f"v_add_f32_dpp v{vb}, v{vb}, v{vb} {ctl} bank_mask:0xf")

    def reduce_maxu(self, va):
        a = self.a
        for ctl in ("row_shr:1", "row_shr:2", "row_shr:4", "row_shr:8"):
            a(f"v_max_u32_dpp v{va}, v{va}, v{va} {ctl} row_mask:0xf bank_mask:0xf bound_ctrl:1")
        for ctl in ("row_bcast:15 row_mask:0xa", "row_bcast:31 row_mask:0xc"):
            a(f"v_max_u32_dpp v{va}, v{va}, v{va} {ctl} bank_mask:0xf")

    def exp_precise(self, dst, x, t0, t1):
        a = self.a
        a(f"v_mul_f32 v{t0}, s60, v{x}")
        a(f"v_rndne_f32 v{t1}, v{t0}")
        a(f"v_sub_f32 v{t0}, v{t0}, v{t1}")
        a(f"v_fmac_f32 v{t0}, s61, v{x}")
        a(f"v_exp_f32 v{dst}, v{t0}")
        a(f"v_cvt_i32_f32 v{t1}, v{t1}")
        a(f"v_ldexp_f32 v{dst}, v{dst}, v{t1}")

    def unpack8(self, dst, src):
        a = self.a
        for i in range(4):
            a(f"v_lshlrev_b32 v{dst+2*i}, 16, v{src+i}")
            a(f"v_and_b32 v{dst+2*i+1}, s62, v{src+i}")

    def normalize8(self, f, vm, vrs, outp):
        a = self.a
        for i in range(4):
            a(f"v_pk_add_f32 v[{f+2*i}:{f+2*i+1}], v[{f+2*i}:{f+2*i+1}], v[{vm}:{vm+1}] op_sel_hi:[1,0] neg_lo:[0,1] neg_hi:[0,1]")
        for i in range(4):
            a(f"v_cvt_pk_bf16_f32 v{outp+i}, v{f+2*i}, v{f+2*i+1}")
        self.unpack8(f, outp)
        for i in range(4):
            a(f"v_pk_mul_f32 v[{f+2*i}:{f+2*i+1}], v[{f+2*i}:{f+2*i+1}], v[{vrs}:{vrs+1}] op_sel_hi:[1,0]")
        for i in range(4):
            a(f"v_cvt_pk_bf16_f32 v{outp+i}, v{f+2*i}, v{f+2*i+1}")

    def rcp_refined(self, dst, sq, t):
        a = self.a
        a(f"v_rcp_f32 v{dst}, v{sq}")
        a(f"v_fma_f32 v{t}, -v{sq}, v{dst}, 1.0")
        a(f"v_fma_f32 v{dst}, v{dst}, v{t}, v{dst}")

    def cmul(self, d, x, y, t):
        a = self.a
        a(f"v_pk_mul_f32 v[{t}:{t+1}], v[{x}:{x+1}], v[{y}:{y+1}] op_sel_hi:[1,0]")
        a(f"v_pk_fma_f32 v[{d}:{d+1}], v[{x}:{x+1}], v[{y}:{y+1}], v[{t}:{t+1}] op_sel:[1,1,0] op_sel_hi:[0,1,1] neg_lo:[1,0,0]")

    def poll(self, name, loads, tagregs, probe_off=None, sleep=4, tmp=60):
        a = self.a
        for (d, va, sb, ex), tg in zip(loads, tagregs):
            a(f"v_not_b32 v{tg}, s33") if False else None
        a(f"s_mov_b32 s41, 0")
        a(f"s_not_b32 s42, s33")
        for tg in tagregs: a(f"v_mov_b32 v{tg}, s42")
        a.label(f"L_{name}_loop")
        for n, ((d, va, sb, ex), tg) in enumerate(zip(loads, tagregs)):
            a(f"v_cmp_ne_u32 vcc, s33, v{tg}")
            a(f"s_and_b64 exec, vcc, s[64:65]" if ex else "s_mov_b64 exec, vcc")
            a(f"s_cbranch_execz L_{name}_skip{n}")
            a(f"global_load_dwordx4 v[{d}:{d+3}], v{va}, s[{sb}:{sb+1}] sc1")
            a.label(f"L_{name}_skip{n}")
            a("s_mov_b64 exec, -1")
        a("s_waitcnt vmcnt(0)")
        a("s_mov_b64 s[42:43], 0")
        for n, ((d, va, sb, ex), tg) in enumerate(zip(loads, tagregs)):
            a(f"v_cmp_ne_u32 vcc, s33, v{tg}")
            if ex: a("s_and_b64 vcc, vcc, s[64:65]")
            a("s_or_b64 s[42:43], s[42:43], vcc")
        a("s_cmp_eq_u64 s[42:43], 0")
        a(f"s_cbranch_scc1 L_{name}_done")
        a("s_add_u32 s41, s41, 1")
        a(f"s_cmp_gt_u32 s41, {POLL_MAX}")
        a(f"s_cbranch_scc1 L_{name}_done")
        a(f"s_sleep {sleep}")
        a(f"s_branch L_{name}_loop")
        a.label(f"L_{name}_done")

    def probe_poll(self, name, va, sb, vt, sleep):
        a = self.a
        a("s_mov_b32 s41, 0")
        a("s_mov_b64 exec, 1")
        a.label(f"L_{name}_probe")
        a(f"global_load_dwordx4 v[{vt}:{vt+3}], v{va}, s[{sb}:{sb+1}] sc1")
        a("s_add_u32 s41, s41, 1")
        a(f"s_cmp_gt_u32 s41, {POLL_MAX}")
        a(f"s_cbranch_scc1 L_{name}_pdone")
        a("s_waitcnt vmcnt(0)")
        a(f"v_cmp_ne_u32 vcc, s33, v{vt+2}")
        a(f"s_cbranch_vccz L_{name}_pdone")
        a(f"s_sleep {sleep}")
        a(f"s_branch L_{name}_probe")
        a.label(f"L_{name}_pdone")
        a("s_waitcnt vmcnt(0)")
        a("s_mov_b64 exec, -1")

    def build(self):
        a = self.a
        a.label(KN)
        a("s_cmp_ge_u32 s2, 256")
        a("s_cbranch_scc1 L_end")
        a("s_load_dwordx16 s[4:19], s[0:1], 0")
        a("s_load_dwordx8 s[20:27], s[0:1], 64")
        a("s_load_dwordx2 s[28:29], s[0:1], 96")
        a("s_load_dwordx2 s[30:31], s[0:1], 112")
        self.stamp(0)
        a("v_lshrrev_b32 v16, 6, v0")
        a("v_and_b32 v1, 63, v0")
        a("v_readfirstlane_b32 s32, v16")
        a("v_lshlrev_b32 v17, 4, v1")
        a("s_lshl_b32 s34, s2, 3")
        a("s_add_u32 s34, s34, s32")
        a("s_lshl_b32 s35, s34, 10")
        a("s_cmp_eq_u32 s32, 8")
        a("s_cbranch_scc1 L_aux")
        a("v_add_u32 v16, s35, v17")
        a("s_waitcnt lgkmcnt(0)")
        a("global_load_dwordx4 v[20:23], v16, s[4:5]")
        a("s_load_dword s38, s[4:5], s35")
        a("s_load_dword s33, s[30:31], 0")
        a("s_lshl_b32 s39, s2, 2")
        a("s_load_dword s40, s[14:15], s39")
        a("global_load_dwordx4 v[24:27], v17, s[20:21]")
        a("s_lshr_b32 s41, s32, 2")
        a("s_lshl_b32 s42, s2, 1")
        a("s_add_u32 s42, s42, s41")
        a("s_lshl_b32 s42, s42, 8")
        a("s_and_b32 s43, s32, 1")
        a("s_lshl_b32 s39, s43, 7")
        a("s_add_u32 s42, s42, s39")
        a("v_lshl_add_u32 v18, v1, 1, s42")
        a("global_load_ushort v28, v18, s[6:7]")
        a("global_load_ushort v29, v18, s[8:9]")
        a("global_load_ushort v30, v18, s[10:11]")
        a("global_load_ushort v31, v18, s[12:13]")
        a("v_and_b32 v19, 0x1fe, v0")
        a("global_load_ushort v14, v19, s[16:17]")
        a("global_load_ushort v15, v19, s[16:17] offset:512")
        self.consts()
        a(f"s_lshl_b32 s39, s2, 6")
        a(f"s_add_u32 s39, s39, {hx(WS_E1)}")
        a("s_add_u32 s44, s30, s39"); a("s_addc_u32 s45, s31, 0")
        a("s_add_u32 s46, s44, 0x200000"); a("s_addc_u32 s47, s45, 0")
        a("s_lshl_b32 s39, s2, 14")
        a(f"s_add_u32 s39, s39, {hx(WS_E1)}")
        a("s_add_u32 s48, s30, s39"); a("s_addc_u32 s49, s31, 0")
        a("s_add_u32 s50, s48, 8192"); a("s_addc_u32 s51, s49, 0")
        a("s_lshl_b32 s39, s2, 14")
        a(f"s_add_u32 s39, s39, {hx(WS_E2)}")
        a("s_add_u32 s54, s30, s39"); a("s_addc_u32 s55, s31, 0")
        a("s_add_u32 s56, s54, 8192"); a("s_addc_u32 s57, s55, 0")
        a("v_and_b32 v44, 0xff, v0")
        a("v_lshlrev_b32 v44, 3, v44")
        a("v_sub_u32 v44, 0x7ff, v44")
        a("v_lshrrev_b32 v45, 8, v0")
        a(f"v_mul_u32_u24 v45, {KT_STRIDE}, v45")
        a(f"v_add_u32 v45, {L_KT + 16}, v45")
        a("s_movk_i32 s39, 0x80")
        a("s_mov_b32 s41, 0xffffbd00")
        for i in range(0, 12, 2):
            a(f"v_subrev_u32 v46, {i}, v44")
            a(f"v_subrev_u32 v47, {i+1}, v44")
            a("v_max_i32 v48, s39, v46")
            a("v_max_i32 v49, s39, v47")
            a("v_cvt_f32_i32 v48, v48")
            a("v_cvt_f32_i32 v49, v49")
            a("v_min_i32 v46, s39, v46")
            a("v_min_i32 v47, s39, v47")
            a("v_cvt_pk_bf16_f32 v48, v48, v49")
            a("v_and_b32 v49, 0xffff, v48")
            a("v_add3_u32 v46, v46, v49, s41")
            a(f"v_lshl_add_u32 v{32+i}, v46, 1, v45")
            if i + 1 < 11:
                a("v_lshrrev_b32 v48, 16, v48")
                a("v_add3_u32 v47, v47, v48, s41")
                a(f"v_lshl_add_u32 v{32+i+1}, v47, 1, v45")
        a("s_waitcnt vmcnt(7) lgkmcnt(0)")
        self.stamp(1)
        a("s_add_u32 s33, s33, 0x9e3779b9")
        a("s_lshl_b32 s38, s38, 16")
        self.unpack8(44, 20)
        a(f"s_mul_i32 s39, s32, {RS}")
        a("v_add_u32 v16, s39, v17")
        a(f"ds_write_b128 v16, v[20:23] offset:{L_XB}")
        for i in range(4):
            a(f"v_pk_add_f32 v[{52+2*i}:{53+2*i}], v[{44+2*i}:{45+2*i}], s[38:39] op_sel_hi:[1,0] neg_lo:[0,1] neg_hi:[0,1]")
        a("v_pk_add_f32 v[60:61], v[52:53], v[54:55]")
        a("v_pk_mul_f32 v[62:63], v[52:53], v[52:53]")
        a("v_pk_add_f32 v[64:65], v[56:57], v[58:59]")
        a("v_pk_fma_f32 v[62:63], v[54:55], v[54:55], v[62:63]")
        a("v_pk_add_f32 v[60:61], v[60:61], v[64:65]")
        a("v_pk_fma_f32 v[62:63], v[56:57], v[56:57], v[62:63]")
        a("v_pk_fma_f32 v[62:63], v[58:59], v[58:59], v[62:63]")
        a("v_add_f32 v60, v60, v61")
        a("v_add_f32 v62, v62, v63")
        self.reduce_sum2(60, 62)
        a("v_readlane_b32 s42, v60, 63")
        a("v_readlane_b32 s43, v62, 63")
        a(f"v_mov_b32 v61, {hx(f2u(1/512))}")
        a("v_mul_f32 v52, s42, v61")
        a("v_mul_f32 v53, s43, v61")
        a("v_add_f32 v54, s38, v52")
        a("v_fma_f32 v53, -v52, v52, v53")
        a("v_max_f32 v53, 0, v53")
        a("v_cvt_pk_bf16_f32 v55, v54, v53")
        a("v_lshlrev_b32 v56, 16, v55")
        a("v_and_b32 v53, s62, v55")
        a(f"v_add_f32 v53, {hx(f2u(1e-5))}, v53")
        a("v_cvt_pk_bf16_f32 v53, v53, v53")
        a("v_lshlrev_b32 v53, 16, v53")
        a("v_sqrt_f32 v53, v53")
        a("v_cvt_pk_bf16_f32 v53, v53, v53")
        a("v_and_b32 v54, s62, v53")
        self.rcp_refined(58, 54, 57)
        a("v_and_b32 v55, 0xffff, v55")
        a("v_or_b32 v66, v55, v54")
        self.normalize8(44, 56, 58, 60)
        a(f"ds_write_b128 v16, v[60:63] offset:{L_XNB}")
        self.unpack8(44, 60)
        a("s_waitcnt vmcnt(6)")
        self.unpack8(52, 24)
        a("v_pk_mul_f32 v[64:65], v[44:45], v[52:53]")
        for i in range(1, 4):
            a(f"v_pk_fma_f32 v[64:65], v[{44+2*i}:{45+2*i}], v[{52+2*i}:{53+2*i}], v[64:65]")
        a("v_add_f32 v64, v64, v65")
        self.reduce_sum2(64, None)
        a("v_cvt_pk_bf16_f32 v64, v64, v64")
        a("v_mov_b32 v67, s33")
        a("s_lshl_b32 s39, s32, 1")
        a(f"s_add_u32 s39, s39, {L_RV}")
        a("v_mov_b32 v65, s39")
        a("s_lshl_b32 s39, s34, 3")
        a(f"s_add_u32 s39, s39, {WS_STATS}")
        a("v_mov_b32 v68, s39")
        a("s_mov_b32 exec_lo, 0"); a("s_mov_b32 exec_hi, 0x80000000")
        a("ds_write_b16 v65, v64")
        a("global_store_dwordx2 v68, v[66:67], s[30:31] sc1")
        a("s_mov_b64 exec, -1")
        a("s_waitcnt lgkmcnt(0)")
        a("s_barrier")
        self.stamp(2)
        a("v_and_b32 v16, 1, v0")
        a(f"v_mul_u32_u24 v16, {4*RS}, v16")
        a("v_and_b32 v17, 0x1fe, v0")
        a("v_add_u32 v16, v16, v17")
        a("v_and_b32 v17, 3, v0")
        a("v_lshlrev_b32 v18, 2, v17")
        for k in range(2):
            for r in range(4):
                a(f"ds_read_u16 v{44+4*k+r}, v16 offset:{L_XNB + r*RS + 512*k}")
        a(f"ds_read_b32 v5, v18 offset:{L_RV}")
        a("v_lshrrev_b32 v18, 2, v0")
        a("v_lshlrev_b32 v18, 14, v18")
        a("v_lshl_add_u32 v18, v17, 4, v18")
        a("v_mov_b32 v4, s33")
        a("v_mov_b32 v8, s33")
        a("s_waitcnt lgkmcnt(0)")
        a("v_lshl_or_b32 v2, v45, 16, v44")
        a("v_lshl_or_b32 v3, v47, 16, v46")
        a("v_lshl_or_b32 v6, v49, 16, v48")
        a("v_lshl_or_b32 v7, v51, 16, v50")
        a("v_mov_b32 v9, v5")
        a("global_store_dwordx4 v18, v[2:5], s[44:45] sc1")
        a("global_store_dwordx4 v18, v[6:9], s[46:47] sc1")
        for k in range(2):
            for r in range(4):
                a(f"ds_read_u16 v{44+4*k+r}, v16 offset:{L_XB + r*RS + 512*k}")
        self.stamp(3)
        a("s_waitcnt vmcnt(5)")
        a("s_lshr_b32 s41, s32, 2")
        a("s_lshr_b32 s42, s32, 1")
        a("s_xor_b32 s42, s42, s41")
        a("s_and_b32 s42, s42, 1")
        a("s_cmp_eq_u32 s41, 0")
        a("s_cselect_b32 s39, 16, 0")
        a("s_lshl_b32 s40, s40, s39")
        a("s_and_b32 s40, s40, s62")
        a("v_mov_b32 v52, s40")
        a("v_lshlrev_b32 v28, 16, v28")
        a("v_lshlrev_b32 v29, 16, v29")
        self.exp_precise(53, 52, 54, 55)
        self.exp_precise(56, 28, 57, 58)
        a("v_cvt_pk_bf16_f32 v53, v53, v56")
        a("s_waitcnt lgkmcnt(0)")
        a("v_lshl_or_b32 v10, v45, 16, v44")
        a("v_lshl_or_b32 v11, v47, 16, v46")
        a("v_lshl_or_b32 v12, v49, 16, v48")
        a("v_lshl_or_b32 v13, v51, 16, v50")
        a("v_and_b32 v56, s62, v53")
        a("v_lshlrev_b32 v53, 16, v53")
        a("v_mul_f32 v56, v56, v53")
        a("v_mul_f32 v57, v29, v53")
        a(f"v_mul_f32 v56, {hx(f2u(-1.4426950408889634))}, v56")
        a(f"v_mul_f32 v57, {hx(f2u(0.15915494309189535))}, v57")
        a("s_cmp_eq_u32 s42, 0")
        a(f"s_cselect_b32 s39, {hx(f2u(8.0))}, 1.0")
        a(f"s_mov_b32 s40, {hx(f2u(256.0))}")
        a(f"s_cselect_b32 s40, {hx(f2u(64.0))}, s40")
        for (ms, d) in (("s39", 60), ("s40", 62)):
            a(f"v_mul_f32 v44, {ms}, v56")
            a(f"v_mul_f32 v45, {ms}, v57")
            a("v_exp_f32 v44, v44")
            a("v_fract_f32 v45, v45")
            a("v_cos_f32 v46, v45")
            a("v_sin_f32 v47, v45")
            a(f"v_mul_f32 v{d}, v44, v46")
            a(f"v_mul_f32 v{d+1}, v44, v47")
        a("s_and_b32 s43, s32, 1")
        a("s_lshl_b32 s43, s43, 8")
        a(f"s_mul_i32 s41, s41, {TCH}")
        a(f"s_mul_i32 s39, s42, {32*TROW}")
        a("s_add_u32 s41, s41, s39")
        a("s_add_u32 s41, s41, s43")
        a(f"s_add_u32 s41, s41, {L_TAB}")
        a("v_lshl_add_u32 v16, v1, 2, s41")
        a("s_cmp_eq_u32 s42, 0")
        a("s_cbranch_scc0 L_gtab")
        self.etab()
        a("s_branch L_tabdone")
        a.label("L_gtab")
        self.gtab()
        a.label("L_tabdone")
        a("s_waitcnt lgkmcnt(0)")
        a("s_barrier")
        self.stamp(4)
        self.kmfma()
        a("s_waitcnt lgkmcnt(0)")
        a("s_barrier")
        self.stamp(5)
        self.copies()
        self.stamp(6)
        a("v_lshlrev_b32 v16, 4, v0")
        if self.probe:
            a("v_mov_b32 v17, 0x1ff0")
            self.probe_poll("e1", 17, 50, 44, self.sleep1)
        self.poll("e1", [(44, 16, 48, False), (48, 16, 50, False)], [46, 50], sleep=self.sleep1)
        self.stamp(7)
        a("v_and_b32 v17, 2, v0")
        a(f"v_mul_u32_u24 v17, {U_STRIDE}, v17")
        a("v_lshrrev_b32 v18, 2, v0")
        a("v_lshl_add_u32 v17, v18, 4, v17")
        a("v_and_b32 v19, 1, v0")
        a("v_lshl_add_u32 v17, v19, 3, v17")
        for k in range(2):
            a(f"ds_write_b64 v17, v[{44+4*k}:{45+4*k}] offset:{L_U + U_STRIDE + 512 + 2048*k}")
            a(f"ds_write_b64 v17, v[{44+4*k}:{45+4*k}] offset:{L_U + 512 + 8 + 2048*k}")
        a("v_and_b32 v19, 3, v0")
        a("v_lshlrev_b32 v19, 1, v19")
        a("v_lshl_add_u32 v18, v18, 3, v19")
        a("v_sub_u32 v18, 0xffff, v18")
        for k in range(2):
            src = 47 + 4*k
            for e in range(2):
                d = 52 + 2*k + e
                if e == 0: a(f"v_lshlrev_b32 v56, 16, v{src}")
                else: a(f"v_and_b32 v56, s62, v{src}")
                a("v_ashrrev_i32 v57, 31, v56")
                a("v_or_b32 v57, s63, v57")
                a("v_xor_b32 v56, v56, v57")
                a(f"v_subrev_u32 v57, {1024*k + e}, v18")
                a(f"v_bfi_b32 v{d}, s62, v56, v57")
        a("v_max_u32 v56, v52, v53"); a("v_min_u32 v57, v52, v53")
        a("v_max_u32 v58, v54, v55"); a("v_min_u32 v59, v54, v55")
        a("v_max_u32 v57, v57, v59")
        a("v_med3_u32 v57, v56, v58, v57")
        a("v_max_u32 v56, v56, v58")
        a("v_lshlrev_b32 v16, 3, v0")
        a(f"ds_write_b64 v16, v[56:57] offset:{L_KEYS}")
        a("v_lshlrev_b32 v14, 16, v14")
        a("v_lshlrev_b32 v15, 16, v15")
        a("s_cmp_lt_u32 s32, 4")
        a("s_cbranch_scc1 L_cpre")
        self.r_pre()
        a.label("L_cpre")
        a("s_waitcnt lgkmcnt(0)")
        a("s_barrier")
        self.stamp(8)
        a("s_cmp_lt_u32 s32, 4")
        a("s_cbranch_scc0 L_rwave")
        self.conv()
        a("s_branch L_b5")
        a.label("L_rwave")
        self.r_main()
        a.label("L_b5")
        a("s_waitcnt lgkmcnt(0)")
        a("s_barrier")
        self.stamp(10)
        self.final()
        a("s_branch L_fin")
        self.aux()
        a.label("L_fin")
        self.write_stamps()
        a.label("L_end")
        a("s_endpgm")
        a.label("L_codeend")
        return a.finish()

    def consts(self):
        a = self.a
        a("s_mov_b32 s60, 0x3fb8aa00")
        a(f"s_mov_b32 s61, {hx(f2u(1.4426950408889634 - struct.unpack('<f', struct.pack('<I', 0x3fb8aa00))[0]))}")
        a("s_mov_b32 s62, 0xffff0000")
        a("s_mov_b32 s63, 0x80000000")

    def emit_row(self, reg, row, neg=False):
        a = self.a
        t = 58 + (row & 1)
        a(f"v_cvt_pk_bf16_f32 v{t}, v{reg}, {'-' if neg else ''}v{reg+1}")
        a(f"ds_write_b32 v16, v{t} offset:{row*TROW}")

    def etab(self):
        a = self.a
        P = {1: 60}
        a("v_mov_b32 v58, 0x3f80")
        a("ds_write_b32 v16, v58 offset:0")
        self.emit_row(60, 1)
        Q = {1: 62, 2: 64, 3: 66}
        self.cmul(64, 62, 62, 64)
        self.cmul(66, 64, 62, 66)
        for j in range(2, 8):
            P[j] = 68 + 2 * (j - 2)
            self.cmul(P[j], P[j-1], 60, P[j])
            self.emit_row(P[j], j)
        for k in range(1, 4):
            self.emit_row(Q[k], 8 * k)
            for j in range(1, 8):
                t = 44 + 2 * (j & 3)
                self.cmul(t, P[j], Q[k], t)
                self.emit_row(t, 8 * k + j)

    def gtab(self):
        a = self.a
        a("v_lshlrev_b32 v30, 16, v30")
        a("v_lshlrev_b32 v31, 16, v31")
        a("v_add_f32 v53, v53, v53")
        G = {0: 64}
        a("v_mul_f32 v64, v30, v53")
        a("v_mul_f32 v65, v31, v53")
        self.emit_row(64, 0, True)
        F = {1: 62}
        for k in range(2, 9): F[k] = 80 + 2 * (k - 2)
        self.cmul(F[2], F[1], F[1], F[2])
        for j in range(1, 8):
            G[j] = 66 + 2 * (j - 1)
            self.cmul(G[j], G[j-1], 60, G[j])
            self.emit_row(G[j], j, True)
            if j == 1: self.cmul(F[3], F[2], F[1], F[3])
            if j == 2: self.cmul(F[4], F[2], F[2], F[4])
            if j == 3: self.cmul(F[5], F[4], F[1], F[5])
            if j == 4: self.cmul(F[6], F[4], F[2], F[6])
            if j == 5: self.cmul(F[7], F[4], F[3], F[7])
            if j == 6: self.cmul(F[8], F[4], F[4], F[8])
        rows = [(8, 0, 1), (9, 2, 1), (10, 4, 1), (11, 6, 1), (12, 0, 2), (13, 4, 2), (14, 0, 3), (15, 4, 3),
                (16, 0, 4), (17, 0, 5), (18, 0, 6), (19, 0, 7), (20, 0, 8)]
        for n, (row, g, f) in enumerate(rows):
            t = 44 + 2 * (n & 3)
            self.cmul(t, G[g], F[f], t)
            self.emit_row(t, row, True)

    def kmfma(self):
        a = self.a
        a("s_lshr_b32 s41, s32, 2")
        a("s_bfe_u32 s42, s32, 0x10001")
        a("s_and_b32 s43, s32, 1")
        a("v_and_b32 v16, 15, v1")
        a("v_lshrrev_b32 v17, 4, v1")
        a(f"v_mul_u32_u24 v18, {TROW}, v16")
        a("v_lshl_add_u32 v18, v17, 4, v18")
        a(f"s_mul_i32 s39, s41, {TCH}")
        a(f"s_add_u32 s39, s39, {L_TAB}")
        a(f"s_mul_i32 s40, s43, {16*TROW}")
        a("s_add_u32 s40, s40, s39")
        a("v_add_u32 v19, s40, v18")
        a(f"s_mul_i32 s40, s42, {16*TROW}")
        a("s_add_u32 s40, s40, s39")
        a(f"s_add_u32 s40, s40, {32*TROW}")
        a("v_add_u32 v18, s40, v18")
        for s in range(8):
            a(f"ds_read_b128 v[{44+8*s}:{47+8*s}], v19 offset:{64*s}")
            a(f"ds_read_b128 v[{48+8*s}:{51+8*s}], v18 offset:{64*s}")
        a("v_lshrrev_b32 v20, 2, v16")
        a("v_sub_u32 v20, 4, v20")
        a("v_min_u32 v20, 3, v20")
        a("v_add_u32 v21, 0xf8, v16")
        a("v_cmp_gt_u32 vcc, 8, v16")
        a("v_cndmask_b32 v21, v21, v16, vcc")
        a("v_bfe_u32 v22, v16, 1, 1")
        a("v_lshlrev_b32 v22, 6, v22")
        a("v_and_b32 v23, 1, v16")
        a("v_add_u32 v22, v22, v23")
        a("v_add_u32 v22, 0x180, v22")
        a("v_cmp_gt_u32 vcc, 12, v16")
        a("v_cndmask_b32 v21, v22, v21, vcc")
        a("s_cmp_eq_u32 s42, 0")
        a("s_cbranch_scc1 L_kth0")
        a("v_add_u32 v21, 16, v16")
        a("v_lshlrev_b32 v21, 5, v21")
        a("v_mov_b32 v20, 0")
        a.label("L_kth0")
        a("s_lshl_b32 s43, s43, 4")
        a("v_lshl_add_u32 v22, v17, 2, s43")
        a("v_lshlrev_b32 v22, v20, v22")
        a("v_add_u32 v21, v21, v22")
        a(f"s_mul_i32 s41, s41, {KT_STRIDE}")
        a(f"s_add_u32 s41, s41, {L_KT + 16}")
        a("v_lshl_add_u32 v21, v21, 1, s41")
        a("v_lshlrev_b32 v20, v20, 2")
        a("v_add_u32 v22, v21, v20")
        a("v_add_u32 v23, v22, v20")
        a("v_add_u32 v24, v23, v20")
        for s in range(8):
            a(f"s_waitcnt lgkmcnt({14-2*s})")
            c = "0" if s == 0 else "v[28:31]"
            a(f"v_mfma_f32_16x16x32_bf16 v[28:31], v[{44+8*s}:{47+8*s}], v[{48+8*s}:{51+8*s}], {c}")
        a("s_cmp_eq_u32 s42, 0")
        a("s_cselect_b32 s39, 16, 5")
        a("v_cmp_gt_u32 vcc, s39, v16")
        a("v_cvt_pk_bf16_f32 v28, v28, v29")
        a("v_cvt_pk_bf16_f32 v30, v30, v31")
        a("s_and_b64 exec, exec, vcc")
        a("ds_write_b16 v21, v28")
        a("ds_write_b16_d16_hi v22, v28")
        a("ds_write_b16 v23, v30")
        a("ds_write_b16_d16_hi v24, v30")
        a("s_mov_b64 exec, -1")

    def copies(self):
        a = self.a
        for i in range(11):
            a(f"ds_read_u16 v{44+i}, v{32+i}")
        a(f"s_mov_b32 s39, {L_KC}")
        a("v_and_b32 v16, 0xff, v0")
        a("v_lshlrev_b32 v16, 4, v16")
        a("v_lshrrev_b32 v17, 8, v0")
        a(f"v_mul_u32_u24 v17, {KC_CH}, v17")
        a(f"v_add3_u32 v16, v16, v17, s39")
        a("s_waitcnt lgkmcnt(0)")
        V = lambda i: 44 + i
        pk = lambda d, i: a(f"v_lshl_or_b32 v{d}, v{V(i+1)}, 16, v{V(i)}")
        for n in range(4): pk(56 + n, 2 * n)
        for n in range(4): pk(60 + n, 2 * n + 1)
        a(f"ds_write_b128 v16, v[56:59] offset:{3*KC_E + 16}")
        a(f"ds_write_b128 v16, v[60:63] offset:{2*KC_E + 16}")
        for n in range(3): a(f"v_mov_b32 v{64+n}, v{57+n}")
        pk(67, 8)
        for n in range(3): a(f"v_mov_b32 v{68+n}, v{61+n}")
        pk(71, 9)
        a(f"ds_write_b128 v16, v[64:67] offset:{1*KC_E + 16}")
        a(f"ds_write_b128 v16, v[68:71] offset:{0*KC_E + 16}")

    def r_pre(self):
        a = self.a
        a(f"s_cmp_ge_u32 s2, {NFFN}")
        a("s_cbranch_scc1 L_rpre_done")
        a("s_and_b32 s39, s2, 7")
        a("s_mul_i32 s39, s39, 14")
        a("s_lshr_b32 s40, s2, 3")
        a("s_add_u32 s39, s39, s40")
        a("s_lshl_b32 s40, s39, 14")
        a("s_add_u32 s36, s26, s40"); a("s_addc_u32 s37, s27, 0")
        a("v_subrev_u32 v16, 256, v0")
        a("v_lshlrev_b32 v16, 2, v16")
        for f in range(16):
            if f and f % 4 == 0:
                a("s_add_u32 s36, s36, 4096"); a("s_addc_u32 s37, s37, 0")
            a(f"global_load_dword v{72+f}, v16, s[36:37] offset:{1024*(f%4)}")
        a.label("L_rpre_done")

    def conv(self):
        a = self.a
        a("s_lshr_b32 s41, s32, 1")
        a("v_and_b32 v16, 15, v1")
        a("v_lshrrev_b32 v17, 4, v1")
        a("v_and_b32 v18, 3, v16")
        a(f"v_mul_u32_u24 v18, {KC_E}, v18")
        a("v_lshrrev_b32 v19, 2, v16")
        a("v_sub_u32 v19, v17, v19")
        a("v_lshl_add_u32 v18, v19, 4, v18")
        a(f"s_mul_i32 s39, s41, {KC_CH}")
        a(f"s_add_u32 s39, s39, {L_KC + 64}")
        a("v_add_u32 v20, s39, v18")
        a("v_and_b32 v18, 1, v16")
        a(f"v_mul_u32_u24 v18, {U_STRIDE}, v18")
        a("v_lshrrev_b32 v19, 1, v16")
        a("v_lshlrev_b32 v19, 6, v19")
        a("v_add_u32 v18, v18, v19")
        a("v_lshl_add_u32 v18, v17, 4, v18")
        a(f"s_mul_i32 s39, s41, {2*U_STRIDE}")
        a(f"s_add_u32 s39, s39, {L_U + 512}")
        a("v_add_u32 v21, s39, v18")
        a("v_lshrrev_b32 v18, 1, v16")
        a("v_lshl_add_u32 v18, v18, 2, v17")
        a("v_and_b32 v19, 1, v16")
        a("v_lshlrev_b32 v22, 14, v18")
        a("v_lshl_add_u32 v22, v19, 4, v22")
        a("v_lshlrev_b32 v23, 4, v18")
        a("v_lshl_add_u32 v23, v19, 3, v23")
        a("s_lshl_b32 s39, s2, 1")
        a("s_add_u32 s39, s39, s41")
        a("s_lshl_b32 s39, s39, 5")
        a(f"s_add_u32 s39, s39, {hx(WS_E2)}")
        a("s_add_u32 s52, s30, s39"); a("s_addc_u32 s53, s31, 0")
        a("s_lshl_b32 s39, s41, 12")
        a(f"s_add_u32 s39, s39, {L_YALL}")
        a("v_add_u32 v23, s39, v23")
        a("s_bitcmp1_b32 s32, 0")
        a("s_cbranch_scc1 L_convB")
        seqA = [(0,7),(1,6),(0,6),(0,2),(2,5),(1,5),(1,1),(3,4),(2,4),(2,0),(4,3),(3,3),(5,2),(4,2),(6,1),(5,1),(7,0),(6,0)]
        cA = {(m,i): m+i for (m,i) in seqA}
        self.conv_variant("A", seqA, [7, 6, 2])
        a("s_branch L_convdone")
        a.label("L_convB")
        seqB = [(0,5),(1,4),(0,4),(0,3),(0,1),(0,0),(2,3),(1,3),(1,2),(1,0),(3,2),(2,2),(2,1),(4,1),(3,1),(3,0),(5,0),(4,0)]
        self.conv_variant("B", seqB, [5, 4, 3, 1, 0])
        a.label("L_convdone")

    def conv_variant(self, nm, seq, cs):
        a = self.a
        AR = lambda m: 44 + 4 * m
        BR = lambda i: 76 + 4 * i
        ACC = {c: 108 + 4 * n for n, c in enumerate(cs)}
        ms = sorted({m for m, i in seq}); is_ = sorted({i for m, i in seq})
        rdA = lambda m: f"ds_read_b128 v[{AR(m)}:{AR(m)+3}], v20 offset:{64*(63-8*m)}"
        rdB = lambda i: f"ds_read_b128 v[{BR(i)}:{BR(i)+3}], v21 offset:{512*i}"
        first = {}
        for n, (m, i) in enumerate(seq):
            first.setdefault(("A", m), n); first.setdefault(("B", i), n)
        last = {}
        for n, (m, i) in enumerate(seq):
            last[("A", m)] = n; last[("B", i)] = n
        order0 = sorted(first, key=lambda k: first[k])
        for c in cs:
            for r in range(4): a(f"v_mov_b32 v{ACC[c]+r}, 0")
        for k in order0:
            a(rdA(k[1]) if k[0] == "A" else rdB(k[1]))
        a("v_subrev_u32 v20, 64, v20")
        a("v_subrev_u32 v21, 64, v21")
        a("s_mov_b32 s39, 8")
        reload_after = {}
        for k, n in last.items(): reload_after.setdefault(n, []).append(k)
        issue = []
        for n in range(len(seq)):
            for k in sorted(reload_after.get(n, []), key=lambda k: first[k]): issue.append((n, k))
        def younger(k, n_use, prologue):
            if prologue:
                pos = order0.index(k)
                cnt = len(order0) - 1 - pos + sum(1 for (n, kk) in issue if n < n_use)
            else:
                pos = [kk for (_, kk) in issue].index(k)
                cnt = len(issue) - 1 - pos + sum(1 for (n, kk) in issue if n < n_use)
            return cnt
        a("s_waitcnt lgkmcnt(0)")
        a.label(f"L_conv{nm}_loop")
        covered = -1
        waited = set()
        for n, (m, i) in enumerate(seq):
            needw = None
            for k in (("A", m), ("B", i)):
                if first[k] == n:
                    y = min(younger(k, n, False), 15)
                    needw = y if needw is None else min(needw, y)
            if needw is not None:
                if n not in waited:
                    a(f"s_waitcnt lgkmcnt({needw})")
            c = m + i
            a(f"v_mfma_f32_16x16x32_bf16 v[{ACC[c]}:{ACC[c]+3}], v[{AR(m)}:{AR(m)+3}], v[{BR(i)}:{BR(i)+3}], v[{ACC[c]}:{ACC[c]+3}]")
            for k in sorted(reload_after.get(n, []), key=lambda k: first[k]):
                a(rdA(k[1]) if k[0] == "A" else rdB(k[1]))
        a("v_subrev_u32 v20, 64, v20")
        a("v_subrev_u32 v21, 64, v21")
        a("s_sub_u32 s39, s39, 1")
        a("s_cmp_lg_u32 s39, 0")
        a(f"s_cbranch_scc1 L_conv{nm}_loop")
        self.stamp(9)
        a("s_waitcnt lgkmcnt(0)")
        for n, c in enumerate(cs):
            g = 44 + 4 * n
            a(f"v_cvt_pk_bf16_f32 v{g}, v{ACC[c]}, v{ACC[c]+1}")
            a(f"v_cvt_pk_bf16_f32 v{g+1}, v{ACC[c]+2}, v{ACC[c]+3}")
            a(f"v_mov_b32 v{g+2}, s33")
            a(f"v_mov_b32 v{g+3}, 0")
            a(f"v_add_u32 v{76+n}, {hx(c*32*16384)}, v22")
            a(f"global_store_dwordx4 v{76+n}, v[{g}:{g+3}], s[52:53] sc1")
            a(f"ds_write_b64 v23, v[{g}:{g+1}] offset:{512*c}")

    def r_main(self):
        a = self.a
        a(f"s_cmp_ge_u32 s2, {NFFN}")
        a("s_cbranch_scc1 L_b5")
        a("s_waitcnt vmcnt(0)")
        a("s_mov_b32 s39, 0x05040100")
        a("s_mov_b32 s40, 0x07060302")
        for fp in range(8):
            a(f"v_perm_b32 v{88+2*fp}, v{73+2*fp}, v{72+2*fp}, s39")
            a(f"v_perm_b32 v{89+2*fp}, v{73+2*fp}, v{72+2*fp}, s40")
        a(f"v_mov_b32 v16, {L_FLAG}")
        a("s_mov_b32 s41, 0")
        a.label("L_hpoll")
        a("ds_read_b32 v17, v16")
        a("s_add_u32 s41, s41, 1")
        a(f"s_cmp_gt_u32 s41, {POLL_MAX*10}")
        a("s_cbranch_scc1 L_hdone")
        a("s_waitcnt lgkmcnt(0)")
        a("v_cmp_eq_u32 vcc, 0, v17")
        a("s_cbranch_vccz L_hdone")
        a("s_sleep 1")
        a("s_branch L_hpoll")
        a.label("L_hdone")
        a(f"v_mov_b32 v16, {L_H}")
        for n in range(4):
            a(f"ds_read_b128 v[{44+4*n}:{47+4*n}], v16 offset:{16*n}")
        for n in range(4): a(f"v_mov_b32 v{104+n}, 0")
        a("s_waitcnt lgkmcnt(0)")
        a("v_mov_b32 v108, 0"); a("v_mov_b32 v109, 0")
        for fp in range(8):
            for tok in range(2):
                for cc in range(2):
                    d = 104 + 4 * tok + cc
                    a(f"v_dot2_f32_bf16 v{d}, v{88+2*fp+cc}, v{44+8*tok+fp}, v{d}")
        a("s_and_b32 s39, s2, 7")
        a("s_mul_i32 s39, s39, 14")
        a("s_lshr_b32 s40, s2, 3")
        a("s_add_u32 s39, s39, s40")
        a("s_lshl_b32 s39, s39, 5")
        a(f"s_add_u32 s39, s39, {hx(WS_E3)}")
        a("s_add_u32 s36, s30, s39"); a("s_addc_u32 s37, s31, 0")
        a("v_subrev_u32 v16, 256, v0")
        a("v_lshlrev_b32 v16, 12, v16")
        a("v_mov_b32 v106, s33"); a("v_mov_b32 v107, 0")
        a("v_mov_b32 v110, s33"); a("v_mov_b32 v111, 0")
        a("global_store_dwordx4 v16, v[104:107], s[36:37] sc1")
        a("global_store_dwordx4 v16, v[108:111], s[36:37] offset:16 sc1")

    def final(self):
        a = self.a
        a("v_lshlrev_b32 v16, 4, v0")
        if self.sleep2: a(f"s_sleep {self.sleep2}")
        if self.probe:
            a("v_mov_b32 v17, 0x1ff0")
            self.probe_poll("e2", 17, 56, 44, self.sleep1)
        self.poll("e2", [(44, 16, 54, False), (48, 16, 56, False)], [46, 50], sleep=self.sleep1)
        self.stamp(11)
        a(f"v_mov_b32 v17, {L_IDX}")
        a("ds_read_b64 v[52:53], v17")
        a("v_and_b32 v17, 1, v0")
        a("v_bfe_u32 v18, v0, 1, 1")
        a("v_lshlrev_b32 v19, 2, v17")
        a("v_lshl_add_u32 v19, v18, 1, v19")
        a("s_lshl_b32 s39, s2, 3")
        a("v_add_u32 v19, s39, v19")
        a("v_lshlrev_b32 v20, 10, v19")
        a("v_lshrrev_b32 v21, 2, v0")
        a("v_lshl_add_u32 v20, v21, 2, v20")
        a("v_cmp_eq_u32 s[66:67], 1, v18")
        for k in range(2):
            y = 44 + 4 * k; xn = 2 + 4 * k; x = 10 + 2 * k; dsk = 14 + k
            o = 56
            for r in range(4):
                half = r & 1; w = r >> 1
                un = (lambda d, s: a(f"v_and_b32 v{d}, s62, v{s}")) if half else (lambda d, s: a(f"v_lshlrev_b32 v{d}, 16, v{s}"))
                un(60 + r, xn + w); un(64 + r, y + w); un(68 + r, x + w)
            for r in range(4): a(f"v_mul_f32 v{72+r}, v{60+r}, v{dsk}")
            a("v_cvt_pk_bf16_f32 v72, v72, v73"); a("v_cvt_pk_bf16_f32 v74, v74, v75")
            a("v_and_b32 v73, s62, v72"); a("v_lshlrev_b32 v72, 16, v72")
            a("v_and_b32 v75, s62, v74"); a("v_lshlrev_b32 v74, 16, v74")
            for r in range(4): a(f"v_add_f32 v{72+r}, v{64+r}, v{72+r}")
            a("v_cvt_pk_bf16_f32 v72, v72, v73"); a("v_cvt_pk_bf16_f32 v74, v74, v75")
            a("v_and_b32 v73, s62, v72"); a("v_lshlrev_b32 v72, 16, v72")
            a("v_and_b32 v75, s62, v74"); a("v_lshlrev_b32 v74, 16, v74")
            for r in range(4): a(f"v_add_f32 v{72+r}, v{68+r}, v{72+r}")
            a("v_cvt_pk_bf16_f32 v72, v72, v73"); a("v_cvt_pk_bf16_f32 v74, v74, v75")
            a("v_and_b32 v73, s62, v72"); a("v_lshlrev_b32 v72, 16, v72")
            a("v_and_b32 v75, s62, v74"); a("v_lshlrev_b32 v74, 16, v74")
            for r in range(4): a(f"v_add_f32 v{72+r}, v{72+r}, v{60+r}")
            if self.perturb and k == 0:
                a("s_lshl_b32 s39, s2, 9")
                a("v_add_u32 v86, s39, v0")
                a("v_cmp_eq_u32 vcc, 0, v86")
                a(f"v_mov_b32 v86, {hx(f2u(self.perturb/1000))}")
                a("v_cndmask_b32 v86, 0, v86, vcc")
                a("v_add_f32 v72, v72, v86")
            a("v_cvt_pk_bf16_f32 v76, v72, v73")
            a("v_cvt_pk_bf16_f32 v77, v74, v75")
            a("v_cndmask_b32 v78, v77, v76, s[66:67]")
            a("v_cndmask_b32 v79, v76, v77, s[66:67]")
            a("v_mov_b32_dpp v78, v78 quad_perm:[2,3,0,1] row_mask:0xf bank_mask:0xf")
            a("v_cndmask_b32 v80, v79, v78, s[66:67]")
            a("v_cndmask_b32 v81, v78, v79, s[66:67]")
            a("s_mov_b32 s39, 0x05040100")
            a("s_mov_b32 s40, 0x07060302")
            a(f"v_perm_b32 v{82+2*k}, v81, v80, s39")
            a(f"v_perm_b32 v{83+2*k}, v81, v80, s40")
        a("s_waitcnt lgkmcnt(0)")
        for e in range(2):
            a(f"v_add_u32 v21, {e}, v19")
            a("v_cmp_ne_u32 vcc, v21, v52")
            a("v_cmp_ne_u32 s[42:43], v21, v53")
            a("s_and_b64 exec, vcc, s[42:43]")
            a(f"s_cbranch_execz L_fskip{e}")
            a(f"global_store_dword v20, v{82+e}, s[28:29] offset:{1024*e}")
            a(f"global_store_dword v20, v{84+e}, s[28:29] offset:{1024*e+512}")
            a.label(f"L_fskip{e}")
            a("s_mov_b64 exec, -1")

    def aux(self):
        a = self.a
        a.label("L_aux")
        a("s_getpc_b64 s[42:43]")
        a.label("L_pc")
        a(f"s_sub_u32 s42, s42, L_pc-{KN}")
        a("s_subb_u32 s43, s43, 0")
        a("v_lshlrev_b32 v16, 7, v1")
        a("v_mov_b32 v19, s43")
        a("v_add_co_u32 v18, vcc, s42, v16")
        a("v_addc_co_u32 v19, vcc, 0, v19, vcc")
        for n in range(3):
            a(f"v_cmp_gt_u32 vcc, L_codeend-{KN}, v16")
            a("s_and_b64 exec, exec, vcc")
            a(f"s_cbranch_execz L_pfdone")
            a("global_load_dword v20, v[18:19], off")
            a("v_add_u32 v16, 0x2000, v16")
            a("v_add_co_u32 v18, vcc, 0x2000, v18")
            a("v_addc_co_u32 v19, vcc, 0, v19, vcc")
        a.label("L_pfdone")
        a("s_mov_b64 exec, -1")
        for r in range(44, 48): a(f"v_mov_b32 v{r}, 0")
        a("v_lshlrev_b32 v16, 4, v1")
        a("s_mov_b32 exec_hi, 1")
        for n in range(4):
            a(f"ds_write_b128 v16, v[44:47] offset:{L_U + n*U_STRIDE}")
        a("s_mov_b64 exec, 1")
        a(f"ds_write_b128 v16, v[44:47] offset:{L_KT}")
        a(f"ds_write_b128 v16, v[44:47] offset:{L_KT + KT_STRIDE}")
        a(f"ds_write_b128 v16, v[44:47] offset:{L_FLAG}")
        a("s_mov_b64 exec, -1")
        a("s_waitcnt lgkmcnt(0)")
        a("s_load_dword s33, s[30:31], 0")
        self.consts()
        a("s_waitcnt lgkmcnt(0)")
        a("s_add_u32 s33, s33, 0x9e3779b9")
        a("s_barrier")
        a(f"s_cmp_ge_u32 s2, {NFFN}")
        a("s_cbranch_scc1 L_aux_nodma")
        a("s_and_b32 s39, s2, 7")
        a("s_mul_i32 s39, s39, 14")
        a("s_lshr_b32 s40, s2, 3")
        a("s_add_u32 s39, s39, s40")
        a("s_lshl_b32 s39, s39, 5")
        a("v_lshrrev_b32 v16, 1, v1")
        a("v_mul_u32_u24 v16, 3584, v16")
        a("v_and_b32 v17, 1, v1")
        a("v_lshl_add_u32 v16, v17, 4, v16")
        a("v_add_u32 v16, s39, v16")
        a(f"s_mov_b32 s40, {L_WG}")
        a("s_mov_b32 s41, 16")
        a.label("L_dma")
        a("s_mov_b32 m0, s40")
        a("s_add_u32 s39, s40, 16384")
        a("global_load_lds_dwordx4 v16, s[22:23]")
        a("s_mov_b32 m0, s39")
        a("s_add_u32 s40, s40, 1024")
        a("global_load_lds_dwordx4 v16, s[24:25]")
        a(f"v_add_u32 v16, {32*3584}, v16")
        a("s_sub_u32 s41, s41, 1")
        a("s_cmp_lg_u32 s41, 0")
        a("s_cbranch_scc1 L_dma")
        a.label("L_aux_nodma")
        a("s_barrier")
        a("s_barrier")
        for r in range(44, 48): a(f"v_mov_b32 v{r}, 0")
        a("v_mul_u32_u24 v16, 171, v1")
        a("v_lshrrev_b32 v16, 9, v16")
        a("v_mul_u32_u24 v17, 3, v16")
        a("v_sub_u32 v17, v1, v17")
        a(f"v_mul_u32_u24 v16, {KC_E}, v16")
        a("v_lshl_add_u32 v16, v17, 4, v16")
        a(f"v_add_u32 v16, {L_KC}, v16")
        a("s_mov_b32 exec_lo, 0xffffff"); a("s_mov_b32 exec_hi, 0")
        a(f"ds_write_b128 v16, v[44:47] offset:{2*2056}")
        a("s_mov_b64 exec, -1")
        a("s_waitcnt lgkmcnt(0)")
        a("s_barrier")
        self.stamp(8)
        a("s_cmp_lg_u32 s2, 0")
        a("s_cbranch_scc1 L_noepoch")
        a("v_mov_b32 v16, 0"); a("v_mov_b32 v17, s33")
        a("s_mov_b64 exec, 1")
        a("global_store_dword v16, v17, s[30:31] sc1")
        a("s_mov_b64 exec, -1")
        a.label("L_noepoch")
        a("v_lshlrev_b32 v16, 6, v1")
        for n in range(4):
            a(f"ds_read_b128 v[{44+4*n}:{47+4*n}], v16 offset:{L_KEYS + 16*n}")
        a("s_waitcnt lgkmcnt(0)")
        for n in range(1, 8):
            a(f"v_max_u32 v45, v45, v{45+2*n}")
            a(f"v_med3_u32 v45, v44, v{44+2*n}, v45")
            a(f"v_max_u32 v44, v44, v{44+2*n}")
        a("v_mov_b32 v46, v44")
        self.reduce_maxu(46)
        a("v_readlane_b32 s44, v46, 63")
        a("v_cmp_eq_u32 vcc, s44, v44")
        a("v_cndmask_b32 v46, v44, v45, vcc")
        self.reduce_maxu(46)
        a("v_readlane_b32 s45, v46, 63")
        a("s_and_b32 s46, s44, 0xffff"); a("s_sub_u32 s46, 0xffff, s46")
        a("s_and_b32 s47, s45, 0xffff"); a("s_sub_u32 s47, 0xffff, s47")
        a("s_min_u32 s46, s46, 2047"); a("s_min_u32 s47, s47, 2047")
        a("v_mov_b32 v46, s46"); a("v_mov_b32 v47, s47")
        a(f"v_mov_b32 v16, {L_IDX}")
        a("s_mov_b64 exec, 1")
        a("ds_write_b64 v16, v[46:47]")
        a("s_mov_b64 exec, -1")
        self.stamp(1)
        a("v_and_b32 v24, 1, v1")
        a("v_bfe_u32 v25, v1, 1, 1")
        a("v_cmp_eq_u32 s[66:67], 1, v24")
        a("v_cndmask_b32 v26, v46, v47, s[66:67]")
        a("s_lshl_b32 s39, s2, 1")
        a("v_add_u32 v27, s39, v25")
        a("v_lshlrev_b32 v27, 1, v27")
        a("v_lshl_add_u32 v28, v26, 10, v27")
        a("global_load_ushort v29, v28, s[4:5]")
        a("global_load_ushort v30, v27, s[16:17]")
        a(f"s_cmp_ge_u32 s2, {NFFN}")
        a("s_cbranch_scc1 L_aux_b5")
        self.ffn1()
        a.label("L_aux_b5")
        a("s_waitcnt lgkmcnt(0)")
        a("s_barrier")
        self.stamp(10)
        self.ffn_final()
        a("s_branch L_fin")

    def ffn1(self):
        a = self.a
        a("s_lshl_b32 s39, s46, 10"); a("s_lshl_b32 s40, s47, 10")
        a("v_lshlrev_b32 v16, 4, v1")
        a("v_add_u32 v17, s39, v16"); a("v_add_u32 v18, s40, v16")
        a("global_load_dwordx4 v[32:35], v17, s[4:5]")
        a("global_load_dwordx4 v[36:39], v18, s[4:5]")
        a("s_lshl_b32 s39, s46, 3"); a(f"s_add_u32 s39, s39, {WS_STATS}")
        a("s_lshl_b32 s40, s47, 3"); a(f"s_add_u32 s40, s40, {WS_STATS}")
        a("v_mov_b32 v17, s39"); a("v_mov_b32 v18, s40")
        a("s_mov_b32 s41, 0")
        a.label("L_stpoll")
        a("global_load_dwordx2 v[40:41], v17, s[30:31] sc1")
        a("global_load_dwordx2 v[42:43], v18, s[30:31] sc1")
        a("s_add_u32 s41, s41, 1")
        a(f"s_cmp_gt_u32 s41, {POLL_MAX}")
        a("s_cbranch_scc1 L_stdone")
        a("s_waitcnt vmcnt(0)")
        a("v_cmp_ne_u32 vcc, s33, v41")
        a("v_cmp_ne_u32 s[42:43], s33, v43")
        a("s_or_b64 vcc, vcc, s[42:43]")
        a("s_cbranch_vccnz L_stpoll")
        a.label("L_stdone")
        a("s_waitcnt vmcnt(0)")
        self.stamp(2)
        a("v_lshrrev_b32 v16, 2, v1")
        a("v_lshlrev_b32 v16, 6, v16")
        a("v_and_b32 v17, 1, v1")
        a("v_lshl_add_u32 v16, v17, 5, v16")
        a("v_bfe_u32 v17, v1, 1, 1")
        a("v_lshl_add_u32 v16, v17, 3, v16")
        for tok in range(2):
            st = 40 + 2 * tok
            a(f"v_lshlrev_b32 v56, 16, v{st}")
            a(f"v_and_b32 v54, s62, v{st}")
            self.rcp_refined(58, 54, 57)
            self.unpack8(44, 32 + 4 * tok)
            self.normalize8(44, 56, 58, 60)
            a(f"ds_write_b64 v16, v[60:61] offset:{L_XS + 1024*tok}")
            a(f"ds_write_b64 v16, v[62:63] offset:{L_XS + 1024*tok + 16}")
        a("v_and_b32 v16, 1, v1")
        a("v_lshlrev_b32 v16, 10, v16")
        a("v_lshrrev_b32 v17, 4, v1")
        a("v_lshl_add_u32 v16, v17, 4, v16")
        a("v_bfe_u32 v18, v1, 2, 2")
        a("v_lshl_add_u32 v18, v17, 2, v18")
        a("v_lshlrev_b32 v18, 5, v18")
        a("v_and_b32 v19, 3, v1")
        a("v_lshl_add_u32 v18, v19, 3, v18")
        a(f"v_add_u32 v18, {L_WG}, v18")
        a("s_waitcnt lgkmcnt(0)")
        def rd(s, b):
            a(f"ds_read_b128 v[{b}:{b+3}], v16 offset:{L_XS + 64*s}")
            a(f"ds_read_b64_tr_b16 v[{b+4}:{b+5}], v18 offset:{1024*s}")
            a(f"ds_read_b64_tr_b16 v[{b+6}:{b+7}], v18 offset:{1024*s + 512}")
            a(f"ds_read_b64_tr_b16 v[{b+8}:{b+9}], v18 offset:{16384 + 1024*s}")
            a(f"ds_read_b64_tr_b16 v[{b+10}:{b+11}], v18 offset:{16384 + 1024*s + 512}")
        B0 = [64, 76, 88]
        rd(0, B0[0]); rd(1, B0[1])
        for s in range(16):
            if s + 2 < 16: rd(s + 2, B0[(s + 2) % 3])
            n_after = 5 * min(2, 15 - s)
            a(f"s_waitcnt lgkmcnt({n_after})")
            b = B0[s % 3]
            cg = "0" if s == 0 else "v[44:47]"; cu = "0" if s == 0 else "v[48:51]"
            a(f"v_mfma_f32_16x16x32_bf16 v[44:47], v[{b+4}:{b+7}], v[{b}:{b+3}], {cg}")
            a(f"v_mfma_f32_16x16x32_bf16 v[48:51], v[{b+8}:{b+11}], v[{b}:{b+3}], {cu}")
        self.stamp(3)
        a("v_cvt_pk_bf16_f32 v52, v44, v45"); a("v_cvt_pk_bf16_f32 v53, v46, v47")
        a("v_cvt_pk_bf16_f32 v54, v48, v49"); a("v_cvt_pk_bf16_f32 v55, v50, v51")
        for r in range(4):
            src = 52 + (r >> 1)
            if r & 1: a(f"v_and_b32 v{44+r}, s62, v{src}"); a(f"v_and_b32 v{48+r}, s62, v{src+2}")
            else: a(f"v_lshlrev_b32 v{44+r}, 16, v{src}"); a(f"v_lshlrev_b32 v{48+r}, 16, v{src+2}")
        for r in range(4): a(f"v_mul_f32 v{56+r}, {hx(f2u(-1.4426950408889634))}, v{44+r}")
        for r in range(4): a(f"v_exp_f32 v{56+r}, v{56+r}")
        for r in range(4): a(f"v_add_f32 v{56+r}, 1.0, v{56+r}")
        for r in range(4): a(f"v_rcp_f32 v{56+r}, v{56+r}")
        for r in range(4): a(f"v_mul_f32 v{44+r}, v{44+r}, v{56+r}")
        a("v_cvt_pk_bf16_f32 v52, v44, v45"); a("v_cvt_pk_bf16_f32 v53, v46, v47")
        a("v_lshlrev_b32 v44, 16, v52"); a("v_and_b32 v45, s62, v52")
        a("v_lshlrev_b32 v46, 16, v53"); a("v_and_b32 v47, s62, v53")
        for r in range(4): a(f"v_mul_f32 v{44+r}, v{44+r}, v{48+r}")
        a("v_cvt_pk_bf16_f32 v52, v44, v45"); a("v_cvt_pk_bf16_f32 v53, v46, v47")
        a("v_and_b32 v16, 15, v1")
        a("v_lshrrev_b32 v17, 4, v1")
        a("v_lshlrev_b32 v18, 5, v16")
        a("v_lshl_add_u32 v18, v17, 3, v18")
        a("v_cmp_gt_u32 vcc, 2, v16")
        a("s_and_b64 exec, exec, vcc")
        a(f"ds_write_b64 v18, v[52:53] offset:{L_H}")
        a("s_mov_b64 exec, 1")
        a("s_waitcnt lgkmcnt(0)")
        a(f"v_mov_b32 v16, {L_FLAG}"); a("v_mov_b32 v17, 1")
        a("ds_write_b32 v16, v17")
        a("s_mov_b64 exec, -1")

    def ffn_final(self):
        a = self.a
        a("s_lshl_b32 s39, s2, 12")
        a(f"s_add_u32 s39, s39, {hx(WS_E3)}")
        a("s_add_u32 s58, s30, s39"); a("s_addc_u32 s59, s31, 0")
        a("v_lshlrev_b32 v16, 4, v1")
        for k in range(1, 4): a(f"v_add_u32 v{16+k}, {1024*k}, v16")
        a(f"v_mul_u32_u24 v20, {2*U_STRIDE}, v25")
        a("v_lshl_add_u32 v20, v26, 1, v20")
        a(f"ds_read_u16 v31, v20 offset:{L_U + U_STRIDE + 512}")
        a("v_lshlrev_b32 v20, 12, v25")
        a("v_lshl_add_u32 v20, v26, 1, v20")
        a(f"v_add_u32 v20, {L_YALL}, v20")
        a("ds_read_u16 v32, v20")
        a("s_mov_b32 s64, -1"); a("s_mov_b32 s65, 0")
        for r in range(56, 60): a(f"v_mov_b32 v{r}, 0")
        if self.sleep2: a(f"s_sleep {self.sleep2}")
        self.poll("e3", [(44, 16, 58, False), (48, 17, 58, False), (52, 18, 58, False), (56, 19, 58, True)], [46, 50, 54, 58], sleep=self.sleep1)
        self.stamp(11)
        a("s_mov_b32 exec_lo, 0")
        a("v_mov_b32 v56, 0"); a("v_mov_b32 v57, 0")
        a("s_mov_b64 exec, -1")
        a("v_add_f32 v44, v44, v48"); a("v_add_f32 v45, v45, v49")
        a("v_add_f32 v52, v52, v56"); a("v_add_f32 v53, v53, v57")
        a("v_add_f32 v44, v44, v52"); a("v_add_f32 v45, v45, v53")
        for ctl in ("row_ror:2", "row_ror:4", "row_ror:8"):
            a(f"v_add_f32_dpp v44, v44, v44 {ctl} row_mask:0xf bank_mask:0xf")
            a(f"v_add_f32_dpp v45, v45, v45 {ctl} row_mask:0xf bank_mask:0xf")
        for sw in ("v_permlane16_swap_b32", "v_permlane32_swap_b32"):
            a("v_mov_b32 v46, v44"); a("v_mov_b32 v47, v45")
            a(f"{sw} v44, v46"); a(f"{sw} v45, v47")
            a("v_add_f32 v44, v44, v46"); a("v_add_f32 v45, v45, v47")
        a("v_cmp_eq_u32 vcc, 1, v25")
        a("v_cndmask_b32 v44, v44, v45, vcc")
        a("v_mov_b32 v46, s44"); a("v_mov_b32 v47, s45")
        a("v_cndmask_b32 v46, v46, v47, s[66:67]")
        a("v_and_b32 v46, s62, v46")
        a("v_ashrrev_i32 v47, 31, v46")
        a("v_not_b32 v47, v47")
        a("v_or_b32 v47, s63, v47")
        a("v_xor_b32 v46, v46, v47")
        a("v_and_b32 v46, s62, v46")
        a(f"v_mul_f32 v46, {hx(f2u(-1.4426950408889634))}, v46")
        a("v_exp_f32 v46, v46")
        a("v_add_f32 v46, 1.0, v46")
        a("v_rcp_f32 v46, v46")
        rnd = lambda r: (a(f"v_cvt_pk_bf16_f32 v{r}, v{r}, v{r}"), a(f"v_lshlrev_b32 v{r}, 16, v{r}"))
        rnd(46); rnd(44)
        a("v_mul_f32 v44, v44, v46"); rnd(44)
        a("s_waitcnt vmcnt(0) lgkmcnt(0)")
        for r in (29, 30, 31, 32): a(f"v_lshlrev_b32 v{r}, 16, v{r}")
        a("v_add_f32 v44, v31, v44"); rnd(44)
        a("v_mul_f32 v45, v31, v30"); rnd(45)
        a("v_add_f32 v45, v32, v45"); rnd(45)
        a("v_add_f32 v45, v29, v45"); rnd(45)
        a("v_add_f32 v45, v45, v44")
        a("v_cvt_pk_bf16_f32 v45, v45, v45")
        a("s_mov_b64 exec, 15")
        a("global_store_short v28, v45, s[28:29]")
        a("s_mov_b64 exec, -1")

    def write_stamps(self):
        if not self.stamps: return
        a = self.a
        n = 12
        a("s_waitcnt vmcnt(0) lgkmcnt(0)")
        a("s_memrealtime s[94:95]")
        a("s_waitcnt lgkmcnt(0)")
        a("s_and_b32 s39, s32, 3")
        a("s_cmp_lg_u32 s39, 0")
        a("s_cbranch_scc1 L_end")
        a("s_lshr_b32 s39, s32, 2")
        a(f"s_mul_i32 s39, s39, {13*8}")
        a(f"s_mul_i32 s40, s2, {3*13*8}")
        a("s_add_u32 s39, s39, s40")
        a(f"s_add_u32 s39, s39, {hx(WS_STAMP)}")
        a("s_add_u32 s36, s30, s39"); a("s_addc_u32 s37, s31, 0")
        a("v_mov_b32 v30, 0")
        a("s_mov_b64 exec, 1")
        for i in range(13):
            a(f"v_mov_b32 v32, s{70+2*i}"); a(f"v_mov_b32 v33, s{71+2*i}")
            a(f"global_store_dwordx2 v30, v[32:33], s[36:37] offset:{8*i}")
            a("s_nop 1")

HEADER = f"""; Fused LayerNorm + S4D causal convolution + expert-choice SwiGLU FFN.
; @launch grid=(256,1,1) block=(576,1,1) lds={LDS_SIZE}
.amdgcn_target "amdgcn-amd-amdhsa--gfx950"
.text
.globl {KN}
.p2align 8
.type {KN},@function
"""
FOOTER = f"""
.section .rodata,"a"
.p2align 6
.amdhsa_kernel {KN}
  .amdhsa_next_free_vgpr 168
  .amdhsa_next_free_sgpr 102
  .amdhsa_accum_offset 168
  .amdhsa_group_segment_fixed_size 0
  .amdhsa_kernarg_size 120
  .amdhsa_user_sgpr_count 2
  .amdhsa_user_sgpr_kernarg_segment_ptr 1
  .amdhsa_system_sgpr_workgroup_id_x 1
  .amdhsa_float_denorm_mode_32 3
.end_amdhsa_kernel
"""

def make(path, **kw):
    g = Gen(**kw)
    body = g.build()
    open(path, "w").write(HEADER + body + FOOTER)
    return g

if __name__ == "__main__":
    out = sys.argv[1]
    kw = {}
    for x in sys.argv[2:]:
        k, v = x.split("=")
        kw[k] = int(v)
    g = make(out, **kw)
    print("nops inserted:", g.a.nnops, "LDS", LDS_SIZE)
```
